```python
import torch

def _softmax(x, axis=-1):
    return torch.softmax(x, dim=axis)
def _gelu(x):
    return torch.nn.functional.gelu(x, approximate="tanh")
def _silu(x):
    return torch.nn.functional.silu(x)
def _sigmoid(x):
    return torch.sigmoid(x)
def _layernorm(x, axis=-1, eps=1e-5):
    m = x.mean(dim=axis, keepdim=True)
    v = x.var(dim=axis, keepdim=True, unbiased=False)
    return (x - m) / torch.sqrt(v + eps)
def _scatter_add(tgt, idx, src, axis=0):
    return tgt.clone().index_add_(axis, idx, src)
def _segment_sum(src, seg, n):
    out = torch.zeros((n,) + src.shape[1:], dtype=src.dtype)
    return out.index_add_(0, seg, src)
def _pad(x, pw):
    flat = tuple(v for pair in reversed(pw) for v in pair)
    return torch.nn.functional.pad(x, flat)

kernel_name = 'standalone__mha_block_cached__sampling'

def setup_inputs():

    _w = (lambda a: (lambda t: t.to(torch.bfloat16) if t.is_floating_point() else t)(torch.as_tensor(a)))
    B, Sq, D = 16, 1, 1024
    H, Sk, Dh = 32, 2048, 128
    return {
        "x": _w((lambda *s: torch.randn(*s, dtype=torch.bfloat16) * 0.8)(B, Sq, D)),
        "k_cache": _w((lambda *s: torch.randn(*s, dtype=torch.bfloat16) * 0.8)(B, H, Sk, Dh)),
        "v_cache": _w((lambda *s: torch.randn(*s, dtype=torch.bfloat16) * 0.05)(B, H, Sk, Dh)),
        "wq": _w((lambda *s: torch.randn(*s, dtype=torch.bfloat16) * 0.8)(D, H * Dh) * (D ** -0.5)),
        "wo": _w((lambda *s: torch.randn(*s, dtype=torch.bfloat16) * 0.05)(H * Dh, D) * ((H * Dh) ** -0.5)),
    }

def reference(x, k_cache, v_cache, wq, wo):
    B, Sq, D = x.shape
    H, Dh = 32, 128
    q = (lambda x, *d: x.permute(*d))((x @ wq).reshape(B, Sq, H, Dh), 0, 2, 1, 3)
    scores = torch.einsum("bhqd,bhkd->bhqk", q, k_cache) * (Dh ** -0.5)
    p = _softmax(scores, axis=-1)
    o = torch.einsum("bhqk,bhkd->bhqd", p, v_cache)
    return (lambda x, *d: x.permute(*d))(o, 0, 2, 1, 3).reshape(B, Sq, H * Dh) @ wo
```

```python
import re

REG = re.compile(r'^(-|abs\(|\|)?([vas])(?:(\d+)|\[(\d+):(\d+)\])\)?\|?$')
TRANS = ("v_exp_f32","v_log_f32","v_rcp_f32","v_rsq_f32","v_sqrt_f32","v_sin_f32","v_cos_f32","v_rcp_iflag_f32")

def regs_of(tok):
    tok = tok.strip()
    if tok == "vcc": return {("s","vcc")}
    if tok == "exec": return {("s","exec")}
    if tok == "m0": return {("s","m0")}
    m = REG.match(tok)
    if not m: return set()
    k = m.group(2)
    if m.group(3) is not None: return {(k,int(m.group(3)))}
    return {(k,i) for i in range(int(m.group(4)), int(m.group(5))+1)}

class Ins:
    def __init__(s, text):
        s.text = text
        t = text.split(";")[0].strip()
        parts = t.split(None,1)
        s.op = parts[0]
        rest = parts[1] if len(parts)>1 else ""
        ops = [o.strip() for o in rest.split(",")]
        mods = ""
        if ops:
            lp = ops[-1].split(None,1)
            if lp:
                ops[-1] = lp[0]; mods = lp[1] if len(lp)>1 else ""
        s.ops = ops; s.mods = mods
        op = s.op
        s.kind = "salu"
        s.dst=set(); s.src=set(); s.srcC=set(); s.srcAB=set(); s.data=set()
        R = [regs_of(o) for o in ops]
        allr = lambda xs: set().union(*xs) if xs else set()
        if op.startswith("v_mfma"):
            s.kind="mfma"; s.dst=R[0]; s.srcAB=R[1]|R[2]; s.srcC=R[3]; s.src=s.srcAB|s.srcC
        elif op.startswith("v_"):
            s.kind="valu"
            if op.startswith("v_permlane"):
                s.dst=R[0]|R[1]; s.src=R[0]|R[1]
            elif op.startswith("v_cmp"):
                s.dst=R[0]; s.src=allr(R[1:])
                if op.startswith("v_cmpx"): s.dst=s.dst|{("s","exec")}
            elif "_co_" in op:
                s.dst=R[0]|R[1]; s.src=allr(R[2:])
            else:
                s.dst=R[0]; s.src=allr(R[1:])
                if op.startswith(("v_fmac","v_dot2c","v_writelane","v_pk_fmac")) or "dpp" in op or "row_" in mods or "quad_perm" in mods: s.src=s.src|R[0]
        elif op.startswith("ds_"):
            s.kind="ds"
            if op.startswith(("ds_read","ds_bpermute","ds_permute","ds_swizzle")) or "_rtn" in op:
                s.dst=R[0]; s.src=allr(R[1:])
            else: s.src=allr(R)
        elif op.startswith(("buffer_","global_")):
            s.kind="vmem"
            if "_load" in op and "lds" not in mods.split() and "_lds_" not in op:
                s.dst=R[0]; s.src=allr(R[1:])
            else:
                s.src=allr(R)
                if op.startswith("buffer_"): s.data=R[0] if R else set()
                else: s.data=R[1] if len(R)>1 else set()
                if "atomic" in op and "sc0" in mods.split():
                    s.dst = R[0]
        else:
            s.kind="salu"
            if op.startswith(("s_cmp","s_cbranch","s_branch","s_waitcnt","s_nop","s_barrier","s_sleep","s_endpgm","s_setprio","s_bitcmp","s_setpc")):
                s.src=allr(R)
            else:
                s.dst=R[0] if R else set(); s.src=allr(R[1:])
                if "saveexec" in op: s.dst=s.dst|{("s","exec")}
        s.trans = op.replace("_e32","").replace("_e64","") in TRANS
        s.dpp = ("dpp" in op) or ("row_" in mods) or ("quad_perm" in mods)
        s.permlane = op.startswith("v_permlane")
        s.rdlane = op.startswith(("v_readlane","v_readfirstlane"))
        s.wide_store = s.kind=="vmem" and ("store" in op) and (op.endswith("x4") or op.endswith("x3"))
        s.ctrl = op.startswith(("s_cbranch","s_branch","s_call","s_setpc","s_swappc","s_endpgm"))
        s.states = 1
        if op=="s_nop": s.states=int(ops[0],0)+1

def vg(rs): return {r for r in rs if r[0] in "va"}
def sg(rs): return {r for r in rs if r[0]=="s"}

def need(p, c):
    n=0
    if p.kind=="valu":
        w=vg(p.dst); ws=sg(p.dst)
        if c.kind=="mfma" and w & c.src: n=max(n,2)
        if p.trans and c.kind in("valu","mfma") and w & c.src: n=max(n,1)
        if (c.permlane or c.dpp) and w & c.src: n=max(n,2)
        if c.rdlane and w & c.src: n=max(n,1)
        if ws:
            if c.kind in("valu","mfma") and ws & c.src: n=max(n,4 if (c.rdlane or c.op.startswith("v_writelane")) else 2)
            if c.kind=="vmem" and ws & c.src: n=max(n,5)
            if ("s","exec") in ws and c.kind in("valu","mfma","vmem","ds"): n=max(n,5)
            if c.kind=="salu" and ws & c.src: n=max(n,1)
    if p.kind=="mfma":
        d=p.dst
        if c.kind=="mfma":
            if d & c.srcAB: n=max(n,8)
            if d & c.srcC and d!=c.srcC: n=max(n,6)
            if d & c.dst and d!=c.srcC: n=max(n,8)
        elif c.kind in("valu","vmem","ds"):
            if d & (c.src|c.dst): n=max(n,8)
            if c.kind=="valu" and p.srcC & c.dst: n=max(n,3)
    if p.wide_store and (p.data & c.dst): n=max(n,2)
    if p.kind=="salu" and ("s","m0") in p.dst and c.kind=="vmem" and ("lds" in c.mods.split() or "_lds_" in c.op): n=max(n,1)
    return n

class Asm:
    def __init__(s): s.l=[]
    def __call__(s, text):
        for ln in text.split("\n"):
            if ln.strip(): s.l.append(ln.rstrip())
    def finalize(s):
        out=[]; hist=[]
        def flush():
            mx=0
            for p,d in hist:
                lim = 8 if p.kind=="mfma" else (5 if (p.kind=="valu" and sg(p.dst)) else (2 if p.kind=="valu" or p.wide_store else 0))
                mx=max(mx,lim-d)
            if mx>0: out.append(f"  s_nop {mx-1}")
            hist.clear()
        for ln in s.l:
            t=ln.split(";")[0].strip()
            if not t or t.startswith("."):
                out.append(ln); continue
            if t.endswith(":"):
                flush(); out.append(ln); continue
            c=Ins(ln.strip())
            if c.ctrl and c.op!="s_endpgm":
                mx=0
                for p,d in hist:
                    lim = 8 if p.kind=="mfma" else (5 if (p.kind=="valu" and sg(p.dst)) else (2 if p.kind=="valu" or p.wide_store else 0))
                    mx=max(mx,lim-d-1, need(p,c)-d)
                if mx>0: out.append(f"  s_nop {mx-1}")
                hist.clear(); out.append("  "+ln.strip()); continue
            pad=0
            for p,d in hist: pad=max(pad, need(p,c)-d)
            if pad>0:
                out.append(f"  s_nop {pad-1}")
                hist=[(p,d+pad) for p,d in hist]
            out.append("  "+ln.strip())
            hist=[(p,d+c.states) for p,d in hist if d+c.states<10]
            hist.append((c,0))
        return "\n".join(out)+"\n"
```

```python
import struct, math, sys
from emit import Asm

def f2u(f): return struct.unpack("<I", struct.pack("<f", f))[0]
SCALE = f2u(math.log2(math.e)/math.sqrt(128.0))
NEG = f2u(-1.0e30)
OPOFF = 0x200000

HDR = """; Kernarg layout for this problem (64 bytes, ptrs only, base s[0:1]):
"""

def kd(name, vgpr, accum, sgpr=96):
    return f""".p2align 6
.amdhsa_kernel {name}
  .amdhsa_next_free_vgpr {vgpr}
  .amdhsa_next_free_sgpr {sgpr}
  .amdhsa_accum_offset {accum}
  .amdhsa_group_segment_fixed_size 0
  .amdhsa_kernarg_size 64
  .amdhsa_user_sgpr_count 2
  .amdhsa_user_sgpr_kernarg_segment_ptr 1
  .amdhsa_system_sgpr_workgroup_id_x 1
.end_amdhsa_kernel
"""

def srd(a, d, p, size):
    a(f"s_mov_b32 s{d}, s{p}\ns_and_b32 s{d+1}, s{p+1}, 0xffff\ns_mov_b32 s{d+2}, {size:#x}\ns_mov_b32 s{d+3}, 0x20000")

def prologue(a, name, endl):
    a(f""".globl {name}
.p2align 8
.type {name},@function
{name}:
s_cmp_ge_u32 s2, 256
s_cbranch_scc1 {endl}
s_load_dwordx16 s[4:19], s[0:1], 0
v_and_b32 v1, 63, v0
v_lshrrev_b32 v4, 6, v0
v_and_b32 v2, 15, v0
v_bfe_u32 v3, v0, 4, 2
v_readfirstlane_b32 s54, v4
s_and_b32 s52, s2, 7
s_lshl_b32 s52, s52, 2
s_bfe_u32 s53, s2, 0x20003
s_add_u32 s52, s52, s53
s_lshr_b32 s53, s2, 5
s_waitcnt lgkmcnt(0)""")
    srd(a,20,6,0x10000000); srd(a,24,8,0x10000000); srd(a,28,10,0x800000); srd(a,32,12,0x800000)
    srd(a,36,4,0x8000); srd(a,40,18,0x400000); srd(a,44,14,0x8000)

def selectors(a):
    a("""v_and_b32 v4, 1, v1
v_cmp_eq_u32 vcc, 1, v4
v_mov_b32 v5, 0x0c0c0100
v_mov_b32 v6, 0x01000c0c
v_mov_b32 v7, 0x0c0c0302
v_mov_b32 v16, 0x03020c0c
v_cndmask_b32 v5, v5, v6, vcc
v_cndmask_b32 v7, v7, v16, vcc
v_mov_b32 v6, 0x0c0c0c0c
v_bfe_u32 v4, v1, 1, 2""")
    for w in range(4):
        a(f"v_cmp_eq_u32 vcc, {w}, v4\nv_cndmask_b32 v{8+w}, v6, v5, vcc\nv_cndmask_b32 v{12+w}, v6, v7, vcc")

def frag(a, dst, src, par):
    for w in range(4):
        a(f"v_perm_b32 v{dst+w}, {src}, {src}, v{8+4*par+w}")

def gen_q(a):
    name="mha_q_kernel"
    prologue(a,name,"Lq_end")
    a("""v_lshlrev_b32 v4, 16, v3
v_lshl_add_u32 v17, v2, 4, v4
v_bfe_u32 v4, v1, 3, 1
v_lshlrev_b32 v4, 11, v4
v_lshl_add_u32 v18, v3, 4, v4
s_lshl_b32 s56, s53, 20
s_lshl_b32 s55, s54, 18
s_add_u32 s56, s56, s55
s_lshl_b32 s55, s52, 8
s_add_u32 s56, s56, s55
s_lshl_b32 s57, s53, 8
s_lshl_b32 s55, s54, 6
s_add_u32 s57, s57, s55""")
    for bq in range(8):
        a(f"buffer_load_dwordx4 v[{64+4*bq}:{67+4*bq}], v18, s[36:39], s57 offen\ns_add_u32 s57, s57, 0x1000")
    for t in range(8):
        a(f"buffer_load_dwordx4 v[{96+4*t}:{99+4*t}], v17, s[28:31], s56 offen nt\ns_add_u32 s56, s56, 0x2000")
    selectors(a)
    fb=0
    for t in range(8):
        a(f"s_waitcnt vmcnt({7-t})")
        for bq in range(8):
            f=48+4*(fb%4); fb+=1
            frag(a,f,f"v{64+4*bq+(t>>1)}",t&1)
            acc=f"v[{128+4*bq}:{131+4*bq}]"
            a(f"v_mfma_f32_16x16x32_bf16 {acc}, v[{96+4*t}:{99+4*t}], v[{f}:{f+3}], {acc if t else 0}")
    a("""s_lshl_b32 s55, s54, 13
v_lshlrev_b32 v19, 4, v1
v_add_u32 v6, s55, v19
s_lshl_b32 s55, s54, 11
v_add_u32 v7, s55, v19""")
    for bq in range(8):
        a(f"ds_write_b128 v6, v[{128+4*bq}:{131+4*bq}] offset:{1024*bq}")
    a("s_waitcnt lgkmcnt(0)\ns_barrier")
    for u in range(2):
        for w in range(4):
            r=64+16*u+4*w
            a(f"ds_read_b128 v[{r}:{r+3}], v7 offset:{8192*w+1024*u}")
    a("""s_lshl_b32 s56, s52, 16
s_lshl_b32 s55, s54, 14
s_add_u32 s56, s56, s55
s_lshl_b32 s55, s53, 10
s_add_u32 s56, s56, s55
s_add_u32 s57, s56, 0x2000
s_waitcnt lgkmcnt(0)""")
    for u in range(2):
        b=64+16*u
        for r in range(4):
            a(f"v_add_f32 v{b+r}, v{b+r}, v{b+4+r}\nv_add_f32 v{b+8+r}, v{b+8+r}, v{b+12+r}")
        for r in range(4):
            a(f"v_add_f32 v{b+r}, v{b+r}, v{b+8+r}")
        a(f"buffer_store_dwordx4 v[{b}:{b+3}], v19, s[40:43], s{56+u} offen")
    a("Lq_end:\ns_endpgm")
    return kd(name,160,160)

QG=0; QB=4096; PART=8192; ML=16384; OB=16640
RING=128
ACC=48; S=52; M=80; L=81

def issueK(a, slot):
    r=RING+32*slot
    for s in range(4): a(f"buffer_load_dwordx4 v[{r+4*s}:{r+4*s+3}], v4, s[20:23], s58 offen offset:{64*s} nt")
def issueV(a, slot):
    r=RING+32*slot+16
    for t in range(4): a(f"buffer_load_dwordx4 v[{r+4*t}:{r+4*t+3}], v5, s[24:27], s58 offen offset:{256*t} nt")
    a("s_add_u32 s58, s58, 0x4000")

def block(a, slot, N):
    k=RING+32*slot; v=k+16
    a(f"s_waitcnt vmcnt({N})")
    for s in range(4):
        a(f"v_mfma_f32_16x16x32_bf16 v[{S}:{S+3}], v[{k+4*s}:{k+4*s+3}], v[{16+4*s}:{19+4*s}], {'v[%d:%d]'%(S,S+3) if s else 0}")
    issueK(a,slot)
    a(f"""v_max3_f32 v56, v{S}, v{S+1}, v{S+2}
v_max_f32 v56, v56, v{S+3}
v_mov_b32 v57, v56
v_permlane16_swap_b32 v56, v57
v_max_f32 v56, v56, v57
v_mov_b32 v57, v56
v_permlane32_swap_b32 v56, v57
v_max_f32 v56, v56, v57
v_mul_f32 v56, s59, v56
v_max_f32 v56, v56, v{M}
v_sub_f32 v57, v{M}, v56
v_mov_b32 v{M}, v56
v_exp_f32 v57, v57""")
    for r in range(4): a(f"v_fma_f32 v{58+r}, v{S+r}, s59, -v56")
    for r in range(4): a(f"v_exp_f32 v{58+r}, v{58+r}")
    for r in range(4): a(f"v_mul_f32 v{ACC+r}, v{ACC+r}, v57")
    a(f"""v_cvt_pk_bf16_f32 v62, v58, v59
v_cvt_pk_bf16_f32 v63, v60, v61
v_add_f32 v58, v58, v59
v_add_f32 v60, v60, v61
v_add_f32 v58, v58, v60
v_fma_f32 v{L}, v{L}, v57, v58""")
    for t in range(4): frag(a,64+4*t,f"v{62+(t>>1)}",t&1)
    a(f"s_waitcnt vmcnt({N})")
    for t in range(4):
        a(f"v_mfma_f32_16x16x32_bf16 v[{ACC}:{ACC+3}], v[{v+4*t}:{v+4*t+3}], v[{64+4*t}:{67+4*t}], v[{ACC}:{ACC+3}]")
    issueV(a,slot)

def pair_end(a, pair):
    a(f"""v_mov_b32 v57, v{L}
v_permlane16_swap_b32 v{L}, v57
v_add_f32 v{L}, v{L}, v57
v_mov_b32 v57, v{L}
v_permlane32_swap_b32 v{L}, v57
v_add_f32 v{L}, v{L}, v57
ds_write_b128 v6, v[{ACC}:{ACC+3}] offset:{PART+4096*pair}
ds_write_b64 v7, v[{M}:{M+1}] offset:{ML+32*pair}""")

def init_state(a):
    a(f"v_mov_b32 v{M}, {NEG:#x}\nv_mov_b32 v{L}, 0")
    for r in range(4): a(f"v_mov_b32 v{ACC+r}, 0")

def gen_main(a):
    name="mha_attn_kernel"
    prologue(a,name,"Lm_end")
    a(f"""v_lshlrev_b32 v82, 4, v1
s_lshl_b32 s56, s52, 16
s_lshl_b32 s55, s53, 13
s_add_u32 s56, s56, s55
s_lshl_b32 s55, s54, 11
s_add_u32 s56, s56, s55
buffer_load_dwordx4 v[64:67], v82, s[40:43], s56 offen
buffer_load_dwordx4 v[68:71], v82, s[40:43], s56 offen offset:1024
v_lshlrev_b32 v4, 8, v2
v_lshl_add_u32 v4, v3, 4, v4
v_lshlrev_b32 v5, 10, v3
v_lshl_add_u32 v5, v2, 4, v5
s_lshl_b32 s60, s53, 6
s_add_u32 s60, s60, s52
s_lshl_b32 s60, s60, 19
s_lshl_b32 s55, s54, 12
s_add_u32 s60, s60, s55
s_mov_b32 s58, s60""")
    for d in range(4):
        issueK(a,d); issueV(a,d)
    a("v_mov_b32 v83, v4\nv_mov_b32 v84, v5")
    selectors(a)
    a(f"""v_mov_b32 v4, v83
v_mov_b32 v5, v84
s_mov_b32 s59, {SCALE:#x}
s_lshl_b32 s55, s54, 10
v_add_u32 v6, s55, v82
s_lshl_b32 s55, s54, 3
v_mov_b32 v7, s55
v_lshlrev_b32 v83, 16, v3
v_lshl_add_u32 v83, v2, 4, v83
s_lshl_b32 s61, s52, 18
s_lshl_b32 s55, s54, 9
s_add_u32 s61, s61, s55
v_bfe_u32 v84, v1, 3, 1
v_lshlrev_b32 v84, 8, v84
v_lshl_add_u32 v84, v3, 6, v84
v_add_u32 v84, s55, v84
v_and_b32 v85, 7, v1
v_lshl_add_u32 v85, v85, 1, v84
v_lshlrev_b32 v86, 4, v3
v_add_u32 v86, s55, v86
s_waitcnt vmcnt(32)""")
    for r in range(4): a(f"v_add_f32 v{64+r}, v{64+r}, v{68+r}")
    a(f"ds_write_b128 v6, v[64:67] offset:{QG}\ns_waitcnt lgkmcnt(0)\ns_barrier")
    for w in range(4): a(f"ds_read_b128 v[{64+4*w}:{67+4*w}], v82 offset:{QG+1024*w}")
    a("s_waitcnt lgkmcnt(0)")
    for r in range(4): a(f"v_add_f32 v{64+r}, v{64+r}, v{68+r}\nv_add_f32 v{72+r}, v{72+r}, v{76+r}")
    for r in range(4): a(f"v_add_f32 v{64+r}, v{64+r}, v{72+r}")
    a(f"""v_cvt_pk_bf16_f32 v62, v64, v65
v_cvt_pk_bf16_f32 v63, v66, v67
ds_write_b16 v85, v62 offset:{QB}
ds_write_b16_d16_hi v85, v62 offset:{QB+16}
ds_write_b16 v85, v63 offset:{QB+32}
ds_write_b16_d16_hi v85, v63 offset:{QB+48}
s_waitcnt lgkmcnt(0)""")
    for p in range(2):
        for s in range(4):
            r=16+16*p+4*s
            a(f"ds_read_b128 v[{r}:{r+3}], v86 offset:{QB+256*p+64*s}")
    init_state(a)
    a("s_waitcnt lgkmcnt(0)")
    for i in range(16):
        if i==7: a("s_add_u32 s58, s60, 0x1000000")
        if i==15: a("s_mov_b32 s58, 0x20000000")
        for u in range(4):
            n=4*i+u
            a(f"buffer_load_dwordx4 a[{4*n}:{4*n+3}], v83, s[32:35], s61 offen offset:{256*(n&1)}")
            if n&1: a("s_add_u32 s61, s61, 0x800")
        a("s_call_b64 s[62:63], Lm_body")
        if i==7:
            pair_end(a,0); init_state(a)
            for r in range(16): a(f"v_mov_b32 v{16+r}, v{32+r}")
    pair_end(a,1)
    a(f"""v_bfe_u32 v56, v1, 3, 1
v_lshlrev_b32 v57, 12, v56
v_and_b32 v58, 0x37, v1
v_lshl_add_u32 v57, v58, 4, v57
v_lshlrev_b32 v56, 5, v56
s_waitcnt lgkmcnt(0)
s_barrier
ds_read_b128 v[16:19], v56 offset:{ML}
ds_read_b128 v[20:23], v56 offset:{ML+16}""")
    for w in range(4): a(f"ds_read_b128 v[{64+4*w}:{67+4*w}], v57 offset:{PART+1024*w}")
    a("""s_waitcnt lgkmcnt(4)
v_max3_f32 v24, v16, v18, v20
v_max_f32 v24, v24, v22
v_sub_f32 v16, v16, v24
v_sub_f32 v18, v18, v24
v_sub_f32 v20, v20, v24
v_sub_f32 v22, v22, v24
v_exp_f32 v16, v16
v_exp_f32 v18, v18
v_exp_f32 v20, v20
v_exp_f32 v22, v22
v_mul_f32 v25, v16, v17
v_fmac_f32 v25, v18, v19
v_fmac_f32 v25, v20, v21
v_fmac_f32 v25, v22, v23
v_rcp_f32 v25, v25
v_mul_f32 v16, v16, v25
v_mul_f32 v18, v18, v25
v_mul_f32 v20, v20, v25
v_mul_f32 v22, v22, v25
s_waitcnt lgkmcnt(0)""")
    for r in range(4): a(f"v_mul_f32 v{64+r}, v{64+r}, v16")
    for w in range(1,4):
        for r in range(4): a(f"v_fmac_f32 v{64+r}, v{64+4*w+r}, v{16+2*w}")
    a(f"""v_cvt_pk_bf16_f32 v62, v64, v65
v_cvt_pk_bf16_f32 v63, v66, v67
ds_write_b16 v85, v62 offset:{OB}
ds_write_b16_d16_hi v85, v62 offset:{OB+16}
ds_write_b16 v85, v63 offset:{OB+32}
ds_write_b16_d16_hi v85, v63 offset:{OB+48}
s_waitcnt lgkmcnt(0)""")
    for u in range(4): a(f"ds_read_b128 v[{16+4*u}:{19+4*u}], v84 offset:{OB+16*u}")
    a(f"""v_lshlrev_b32 v56, 13, v3
v_lshl_add_u32 v56, v2, 4, v56
s_lshl_b32 s56, s53, 18
s_lshl_b32 s55, s54, 16
s_add_u32 s56, s56, s55
s_lshl_b32 s55, s52, 8
s_add_u32 s56, s56, s55
s_add_u32 s56, s56, {OPOFF:#x}
s_add_u32 s57, s56, 0x8000
s_waitcnt vmcnt(0) lgkmcnt(0)""")
    for t in range(32):
        f=64+4*(t%4)
        frag(a,f,f"v{16+(t>>1)}",t&1)
        for cg in range(2):
            n=2*t+cg; acc=f"v[{48+4*cg}:{51+4*cg}]"
            a(f"v_mfma_f32_16x16x32_bf16 {acc}, a[{4*n}:{4*n+3}], v[{f}:{f+3}], {acc if t else 0}")
    a("buffer_store_dwordx4 v[48:51], v56, s[40:43], s56 offen\nbuffer_store_dwordx4 v[52:55], v56, s[40:43], s57 offen")
    a("Lm_end:\ns_endpgm")
    a("Lm_body:")
    for d in range(4): block(a,d,32)
    a("s_setpc_b64 s[62:63]")
    return kd(name,512,256)

def gen_fin(a):
    name="mha_fin_kernel"
    prologue(a,name,"Lf_end")
    a(f"""v_lshlrev_b32 v4, 4, v1
s_lshl_b32 s56, s53, 18
s_lshl_b32 s55, s52, 13
s_add_u32 s56, s56, s55
s_add_u32 s56, s56, {OPOFF:#x}
s_add_u32 s57, s56, 0x1000""")
    for i in range(8):
        a(f"buffer_load_dwordx4 v[{16+4*i}:{19+4*i}], v4, s[40:43], s{56+(i>>2)} offen offset:{1024*(i&3)}")
    a("""v_bfe_u32 v5, v1, 3, 1
v_lshlrev_b32 v5, 11, v5
v_lshl_add_u32 v5, v3, 4, v5
v_and_b32 v6, 7, v1
v_lshl_add_u32 v5, v6, 1, v5
s_lshl_b32 s56, s53, 12
s_lshl_b32 s55, s52, 6
s_add_u32 s56, s56, s55
s_waitcnt vmcnt(0)""")
    for st in (4,2,1):
        for i in range(st):
            for r in range(4): a(f"v_add_f32 v{16+4*i+r}, v{16+4*i+r}, v{16+4*(i+st)+r}")
    a("""v_permlane32_swap_b32 v16, v18
v_permlane32_swap_b32 v17, v19
v_add_f32 v16, v16, v18
v_add_f32 v17, v17, v19
v_permlane16_swap_b32 v16, v17
v_add_f32 v16, v16, v17
v_cvt_pk_bf16_f32 v16, v16, v16
buffer_store_short v16, v5, s[44:47], s56 offen
Lf_end:
s_endpgm""")
    return kd(name,48,48)

def main(out):
    a=Asm()
    k=[gen_q(a),gen_main(a),gen_fin(a)]
    t=HDR+"""; @launch kernel=mha_q_kernel grid=(256,1,1) block=(256,1,1) lds=32768
; @launch kernel=mha_attn_kernel grid=(256,1,1) block=(256,1,1) lds=20480
; @launch kernel=mha_fin_kernel grid=(256,1,1) block=(64,1,1) lds=0
.amdgcn_target "amdgcn-amd-amdhsa--gfx950"
.text
"""+a.finalize()+'.section .rodata,"a"\n'+"".join(k)
    open(out,"w").write(t)
main(sys.argv[1])
```

```python
import struct, math, sys
from emit import Asm

def f2u(f): return struct.unpack("<I", struct.pack("<f", f))[0]
SCALE = f2u(math.log2(math.e)/math.sqrt(128.0))
NEG = f2u(-1.0e30)
OPOFF = 0x200000
import os
WOPOL=os.environ.get("WOPOL","")
NOWO=int(os.environ.get("NOWO","0"))

HDR = """; Kernarg layout for this problem (64 bytes, ptrs only, base s[0:1]):
"""

def kd(name, vgpr, accum, sgpr=96):
    return f""".p2align 6
.amdhsa_kernel {name}
  .amdhsa_next_free_vgpr {vgpr}
  .amdhsa_next_free_sgpr {sgpr}
  .amdhsa_accum_offset {accum}
  .amdhsa_group_segment_fixed_size 0
  .amdhsa_kernarg_size 64
  .amdhsa_user_sgpr_count 2
  .amdhsa_user_sgpr_kernarg_segment_ptr 1
  .amdhsa_system_sgpr_workgroup_id_x 1
.end_amdhsa_kernel
"""

def srd(a, d, p, size):
    a(f"s_mov_b32 s{d}, s{p}\ns_and_b32 s{d+1}, s{p+1}, 0xffff\ns_mov_b32 s{d+2}, {size:#x}\ns_mov_b32 s{d+3}, 0x20000")

def prologue(a, name, endl):
    a(f""".globl {name}
.p2align 8
.type {name},@function
{name}:
s_cmp_ge_u32 s2, 256
s_cbranch_scc1 {endl}
s_load_dwordx16 s[4:19], s[0:1], 0
v_and_b32 v1, 63, v0
v_lshrrev_b32 v4, 6, v0
v_and_b32 v2, 15, v0
v_bfe_u32 v3, v0, 4, 2
v_readfirstlane_b32 s54, v4
s_and_b32 s52, s2, 7
s_lshl_b32 s52, s52, 2
s_bfe_u32 s53, s2, 0x20003
s_add_u32 s52, s52, s53
s_lshr_b32 s53, s2, 5
s_waitcnt lgkmcnt(0)""")
    srd(a,20,6,0x10000000); srd(a,24,8,0x10000000); srd(a,28,10,0x800000); srd(a,32,12,0x800000)
    srd(a,36,4,0x8000); srd(a,40,18,0x400000); srd(a,44,14,0x8000)

def selectors(a):
    a("""v_and_b32 v4, 1, v1
v_cmp_eq_u32 vcc, 1, v4
v_mov_b32 v5, 0x0c0c0100
v_mov_b32 v6, 0x01000c0c
v_mov_b32 v7, 0x0c0c0302
v_mov_b32 v16, 0x03020c0c
v_cndmask_b32 v5, v5, v6, vcc
v_cndmask_b32 v7, v7, v16, vcc
v_mov_b32 v6, 0x0c0c0c0c
v_bfe_u32 v4, v1, 1, 2""")
    for w in range(4):
        a(f"v_cmp_eq_u32 vcc, {w}, v4\nv_cndmask_b32 v{8+w}, v6, v5, vcc\nv_cndmask_b32 v{12+w}, v6, v7, vcc")

def frag(a, dst, src, par):
    for w in range(4):
        a(f"v_perm_b32 v{dst+w}, {src}, {src}, v{8+4*par+w}")

def gen_q(a):
    name="mha_q_kernel"
    prologue(a,name,"Lq_end")
    a("""v_lshlrev_b32 v4, 16, v3
v_lshl_add_u32 v17, v2, 4, v4
v_bfe_u32 v4, v1, 3, 1
v_lshlrev_b32 v4, 11, v4
v_lshl_add_u32 v18, v3, 4, v4
s_lshl_b32 s56, s53, 20
s_lshl_b32 s55, s54, 18
s_add_u32 s56, s56, s55
s_lshl_b32 s55, s52, 8
s_add_u32 s56, s56, s55
s_lshl_b32 s57, s53, 8
s_lshl_b32 s55, s54, 6
s_add_u32 s57, s57, s55""")
    for bq in range(8):
        a(f"buffer_load_dwordx4 v[{64+4*bq}:{67+4*bq}], v18, s[36:39], s57 offen\ns_add_u32 s57, s57, 0x1000")
    for t in range(8):
        a(f"buffer_load_dwordx4 v[{96+4*t}:{99+4*t}], v17, s[28:31], s56 offen nt\ns_add_u32 s56, s56, 0x2000")
    selectors(a)
    fb=0
    for t in range(8):
        a(f"s_waitcnt vmcnt({7-t})")
        for bq in range(8):
            f=48+4*(fb%4); fb+=1
            frag(a,f,f"v{64+4*bq+(t>>1)}",t&1)
            acc=f"v[{128+4*bq}:{131+4*bq}]"
            a(f"v_mfma_f32_16x16x32_bf16 {acc}, v[{96+4*t}:{99+4*t}], v[{f}:{f+3}], {acc if t else 0}")
    a("""s_lshl_b32 s55, s54, 13
v_lshlrev_b32 v19, 4, v1
v_add_u32 v6, s55, v19
s_lshl_b32 s55, s54, 11
v_add_u32 v7, s55, v19""")
    for bq in range(8):
        a(f"ds_write_b128 v6, v[{128+4*bq}:{131+4*bq}] offset:{1024*bq}")
    a("s_waitcnt lgkmcnt(0)\ns_barrier")
    for u in range(2):
        for w in range(4):
            r=64+16*u+4*w
            a(f"ds_read_b128 v[{r}:{r+3}], v7 offset:{8192*w+1024*u}")
    a("""s_lshl_b32 s56, s52, 16
s_lshl_b32 s55, s54, 14
s_add_u32 s56, s56, s55
s_lshl_b32 s55, s53, 10
s_add_u32 s56, s56, s55
s_add_u32 s57, s56, 0x2000
s_waitcnt lgkmcnt(0)""")
    for u in range(2):
        b=64+16*u
        for r in range(4):
            a(f"v_add_f32 v{b+r}, v{b+r}, v{b+4+r}\nv_add_f32 v{b+8+r}, v{b+8+r}, v{b+12+r}")
        for r in range(4):
            a(f"v_add_f32 v{b+r}, v{b+r}, v{b+8+r}")
        a(f"buffer_store_dwordx4 v[{b}:{b+3}], v19, s[40:43], s{56+u} offen")
    a("Lq_end:\ns_endpgm")
    return kd(name,160,160)

QG=0; QB=4096; PART=8192; ML=16384; OB=16640
RING=128
ACC=48; S=52; M=80; L=81

def issueK(a, slot):
    r=RING+32*slot
    for s in range(4): a(f"buffer_load_dwordx4 v[{r+4*s}:{r+4*s+3}], v4, s[20:23], s58 offen offset:{64*s} nt")
def issueV(a, slot):
    r=RING+32*slot+16
    for t in range(4): a(f"buffer_load_dwordx4 v[{r+4*t}:{r+4*t+3}], v5, s[24:27], s58 offen offset:{256*t} nt")
    a("s_add_u32 s58, s58, 0x4000")

def block(a, slot, N):
    k=RING+32*slot; v=k+16
    a(f"s_waitcnt vmcnt({N})")
    for s in range(4):
        a(f"v_mfma_f32_16x16x32_bf16 v[{S}:{S+3}], v[{k+4*s}:{k+4*s+3}], v[{16+4*s}:{19+4*s}], {'v[%d:%d]'%(S,S+3) if s else 0}")
    issueK(a,slot)
    a(f"""v_max3_f32 v56, v{S}, v{S+1}, v{S+2}
v_max_f32 v56, v56, v{S+3}
v_mov_b32 v57, v56
v_permlane16_swap_b32 v56, v57
v_max_f32 v56, v56, v57
v_mov_b32 v57, v56
v_permlane32_swap_b32 v56, v57
v_max_f32 v56, v56, v57
v_mul_f32 v56, s59, v56
v_max_f32 v56, v56, v{M}
v_sub_f32 v57, v{M}, v56
v_mov_b32 v{M}, v56
v_exp_f32 v57, v57""")
    for r in range(4): a(f"v_fma_f32 v{58+r}, v{S+r}, s59, -v56")
    for r in range(4): a(f"v_exp_f32 v{58+r}, v{58+r}")
    for r in range(4): a(f"v_mul_f32 v{ACC+r}, v{ACC+r}, v57")
    a(f"""v_cvt_pk_bf16_f32 v62, v58, v59
v_cvt_pk_bf16_f32 v63, v60, v61
v_add_f32 v58, v58, v59
v_add_f32 v60, v60, v61
v_add_f32 v58, v58, v60
v_fma_f32 v{L}, v{L}, v57, v58""")
    for t in range(4): frag(a,64+4*t,f"v{62+(t>>1)}",t&1)
    a(f"s_waitcnt vmcnt({N})")
    for t in range(4):
        a(f"v_mfma_f32_16x16x32_bf16 v[{ACC}:{ACC+3}], v[{v+4*t}:{v+4*t+3}], v[{64+4*t}:{67+4*t}], v[{ACC}:{ACC+3}]")
    issueV(a,slot)

def pair_end(a, pair):
    a(f"""v_mov_b32 v57, v{L}
v_permlane16_swap_b32 v{L}, v57
v_add_f32 v{L}, v{L}, v57
v_mov_b32 v57, v{L}
v_permlane32_swap_b32 v{L}, v57
v_add_f32 v{L}, v{L}, v57
ds_write_b128 v6, v[{ACC}:{ACC+3}] offset:{PART+4096*pair}
ds_write_b64 v7, v[{M}:{M+1}] offset:{ML+32*pair}""")

def init_state(a):
    a(f"v_mov_b32 v{M}, {NEG:#x}\nv_mov_b32 v{L}, 0")
    for r in range(4): a(f"v_mov_b32 v{ACC+r}, 0")

def gen_main(a):
    name="mha_attn_kernel"
    prologue(a,name,"Lm_end")
    a(f"""v_lshlrev_b32 v82, 4, v1
s_lshl_b32 s56, s52, 16
s_lshl_b32 s55, s53, 13
s_add_u32 s56, s56, s55
s_lshl_b32 s55, s54, 11
s_add_u32 s56, s56, s55
buffer_load_dwordx4 v[64:67], v82, s[40:43], s56 offen
buffer_load_dwordx4 v[68:71], v82, s[40:43], s56 offen offset:1024
v_lshlrev_b32 v4, 8, v2
v_lshl_add_u32 v4, v3, 4, v4
v_lshlrev_b32 v5, 10, v3
v_lshl_add_u32 v5, v2, 4, v5
s_lshl_b32 s60, s53, 6
s_add_u32 s60, s60, s52
s_lshl_b32 s60, s60, 19
s_lshl_b32 s55, s54, 12
s_add_u32 s60, s60, s55
s_mov_b32 s58, s60""")
    for d in range(4):
        issueK(a,d); issueV(a,d)
    a("v_mov_b32 v83, v4\nv_mov_b32 v84, v5")
    selectors(a)
    a(f"""v_mov_b32 v4, v83
v_mov_b32 v5, v84
s_mov_b32 s59, {SCALE:#x}
s_lshl_b32 s55, s54, 10
v_add_u32 v6, s55, v82
s_lshl_b32 s55, s54, 3
v_mov_b32 v7, s55
v_lshlrev_b32 v83, 16, v3
v_lshl_add_u32 v83, v2, 4, v83
s_lshl_b32 s61, s52, 18
s_lshl_b32 s55, s54, 9
s_add_u32 s61, s61, s55
v_bfe_u32 v84, v1, 3, 1
v_lshlrev_b32 v84, 8, v84
v_lshl_add_u32 v84, v3, 6, v84
v_add_u32 v84, s55, v84
v_and_b32 v85, 7, v1
v_lshl_add_u32 v85, v85, 1, v84
v_lshlrev_b32 v86, 4, v3
v_add_u32 v86, s55, v86
s_waitcnt vmcnt(32)""")
    for r in range(4): a(f"v_add_f32 v{64+r}, v{64+r}, v{68+r}")
    a(f"ds_write_b128 v6, v[64:67] offset:{QG}\ns_waitcnt lgkmcnt(0)\ns_barrier")
    for w in range(4): a(f"ds_read_b128 v[{64+4*w}:{67+4*w}], v82 offset:{QG+1024*w}")
    a("s_waitcnt lgkmcnt(0)")
    for r in range(4): a(f"v_add_f32 v{64+r}, v{64+r}, v{68+r}\nv_add_f32 v{72+r}, v{72+r}, v{76+r}")
    for r in range(4): a(f"v_add_f32 v{64+r}, v{64+r}, v{72+r}")
    a(f"""v_cvt_pk_bf16_f32 v62, v64, v65
v_cvt_pk_bf16_f32 v63, v66, v67
ds_write_b16 v85, v62 offset:{QB}
ds_write_b16_d16_hi v85, v62 offset:{QB+16}
ds_write_b16 v85, v63 offset:{QB+32}
ds_write_b16_d16_hi v85, v63 offset:{QB+48}
s_waitcnt lgkmcnt(0)""")
    for p in range(2):
        for s in range(4):
            r=16+16*p+4*s
            a(f"ds_read_b128 v[{r}:{r+3}], v86 offset:{QB+256*p+64*s}")
    init_state(a)
    a("s_waitcnt lgkmcnt(0)")
    for i in range(16):
        if i==7: a("s_add_u32 s58, s60, 0x1000000")
        if i==15: a("s_mov_b32 s58, 0x20000000")
        for u in range(4):
            n=4*i+u
            a(f"buffer_load_dwordx4 a[{4*n}:{4*n+3}], v83, s[32:35], {chr(115)+chr(54)+chr(49) if not NOWO else chr(115)+chr(50)+chr(50)} offen offset:{256*(n&1)} {WOPOL}")
            if n&1: a("s_add_u32 s61, s61, 0x800")
        a("s_call_b64 s[62:63], Lm_body")
        if i==7:
            pair_end(a,0); init_state(a)
            for r in range(16): a(f"v_mov_b32 v{16+r}, v{32+r}")
    pair_end(a,1)
    a(f"""v_bfe_u32 v56, v1, 3, 1
v_lshlrev_b32 v57, 12, v56
v_and_b32 v58, 0x37, v1
v_lshl_add_u32 v57, v58, 4, v57
v_lshlrev_b32 v56, 5, v56
s_waitcnt lgkmcnt(0)
s_barrier
ds_read_b128 v[16:19], v56 offset:{ML}
ds_read_b128 v[20:23], v56 offset:{ML+16}""")
    for w in range(4): a(f"ds_read_b128 v[{64+4*w}:{67+4*w}], v57 offset:{PART+1024*w}")
    a("""s_waitcnt lgkmcnt(4)
v_max3_f32 v24, v16, v18, v20
v_max_f32 v24, v24, v22
v_sub_f32 v16, v16, v24
v_sub_f32 v18, v18, v24
v_sub_f32 v20, v20, v24
v_sub_f32 v22, v22, v24
v_exp_f32 v16, v16
v_exp_f32 v18, v18
v_exp_f32 v20, v20
v_exp_f32 v22, v22
v_mul_f32 v25, v16, v17
v_fmac_f32 v25, v18, v19
v_fmac_f32 v25, v20, v21
v_fmac_f32 v25, v22, v23
v_rcp_f32 v25, v25
v_mul_f32 v16, v16, v25
v_mul_f32 v18, v18, v25
v_mul_f32 v20, v20, v25
v_mul_f32 v22, v22, v25
s_waitcnt lgkmcnt(0)""")
    for r in range(4): a(f"v_mul_f32 v{64+r}, v{64+r}, v16")
    for w in range(1,4):
        for r in range(4): a(f"v_fmac_f32 v{64+r}, v{64+4*w+r}, v{16+2*w}")
    a(f"""v_cvt_pk_bf16_f32 v62, v64, v65
v_cvt_pk_bf16_f32 v63, v66, v67
ds_write_b16 v85, v62 offset:{OB}
ds_write_b16_d16_hi v85, v62 offset:{OB+16}
ds_write_b16 v85, v63 offset:{OB+32}
ds_write_b16_d16_hi v85, v63 offset:{OB+48}
s_waitcnt lgkmcnt(0)""")
    for u in range(4): a(f"ds_read_b128 v[{16+4*u}:{19+4*u}], v84 offset:{OB+16*u}")
    a(f"""v_lshlrev_b32 v56, 13, v3
v_lshl_add_u32 v56, v2, 4, v56
s_lshl_b32 s56, s53, 18
s_lshl_b32 s55, s54, 16
s_add_u32 s56, s56, s55
s_lshl_b32 s55, s52, 8
s_add_u32 s56, s56, s55
s_add_u32 s56, s56, {OPOFF:#x}
s_add_u32 s57, s56, 0x8000
s_waitcnt vmcnt(0) lgkmcnt(0)""")
    for t in range(32):
        f=64+4*(t%4)
        frag(a,f,f"v{16+(t>>1)}",t&1)
        for cg in range(2):
            n=2*t+cg; acc=f"v[{48+4*cg}:{51+4*cg}]"
            a(f"v_mfma_f32_16x16x32_bf16 {acc}, a[{4*n}:{4*n+3}], v[{f}:{f+3}], {acc if t else 0}")
    a("buffer_store_dwordx4 v[48:51], v56, s[40:43], s56 offen\nbuffer_store_dwordx4 v[52:55], v56, s[40:43], s57 offen")
    a("Lm_end:\ns_endpgm")
    a("Lm_body:")
    for d in range(4): block(a,d,32)
    a("s_setpc_b64 s[62:63]")
    return kd(name,512,256)

def gen_fin(a):
    name="mha_fin_kernel"
    prologue(a,name,"Lf_end")
    a(f"""v_lshlrev_b32 v4, 4, v1
s_lshl_b32 s56, s53, 18
s_lshl_b32 s55, s52, 13
s_add_u32 s56, s56, s55
s_add_u32 s56, s56, {OPOFF:#x}
s_add_u32 s57, s56, 0x1000""")
    for i in range(8):
        a(f"buffer_load_dwordx4 v[{16+4*i}:{19+4*i}], v4, s[40:43], s{56+(i>>2)} offen offset:{1024*(i&3)}")
    a("""v_bfe_u32 v5, v1, 3, 1
v_lshlrev_b32 v5, 11, v5
v_lshl_add_u32 v5, v3, 4, v5
v_and_b32 v6, 7, v1
v_lshl_add_u32 v5, v6, 1, v5
s_lshl_b32 s56, s53, 12
s_lshl_b32 s55, s52, 6
s_add_u32 s56, s56, s55
s_waitcnt vmcnt(0)""")
    for st in (4,2,1):
        for i in range(st):
            for r in range(4): a(f"v_add_f32 v{16+4*i+r}, v{16+4*i+r}, v{16+4*(i+st)+r}")
    a("""v_permlane32_swap_b32 v16, v18
v_permlane32_swap_b32 v17, v19
v_add_f32 v16, v16, v18
v_add_f32 v17, v17, v19
v_permlane16_swap_b32 v16, v17
v_add_f32 v16, v16, v17
v_cvt_pk_bf16_f32 v16, v16, v16
buffer_store_short v16, v5, s[44:47], s56 offen
Lf_end:
s_endpgm""")
    return kd(name,48,48)

def main(out):
    a=Asm()
    k=[gen_q(a),gen_main(a),gen_fin(a)]
    t=HDR+"""; @launch kernel=mha_q_kernel grid=(256,1,1) block=(256,1,1) lds=32768
; @launch kernel=mha_attn_kernel grid=(256,1,1) block=(256,1,1) lds=20480
; @launch kernel=mha_fin_kernel grid=(256,1,1) block=(64,1,1) lds=0
.amdgcn_target "amdgcn-amd-amdhsa--gfx950"
.text
"""+a.finalize()+'.section .rodata,"a"\n'+"".join(k)
    open(out,"w").write(t)
main(sys.argv[1])
```

```python
import struct, math, sys, os
from emit import Asm

def f2u(f): return struct.unpack("<I", struct.pack("<f", f))[0]
SCALE = f2u(math.log2(math.e)/math.sqrt(128.0))
NEG = f2u(-1.0e30)
OPOFF = 0x200000
STAMP=int(os.environ.get("STAMP","0"))
XPOL=os.environ.get("XPOL","sc1")
FPOL=os.environ.get("FPOL","sc1")
SPIN=int(os.environ.get("SPIN","20000"))
NAME="standalone__mha_block_cached__sampling_kernel"

HDR = """; Kernarg layout for this problem (64 bytes, ptrs only, base s[0:1]):
"""
def stamp(a,i):
    if STAMP: a(f"s_memrealtime s[{86+2*i}:{87+2*i}]")

def srd(a, d, p, size):
    a(f"s_mov_b32 s{d}, s{p}\ns_and_b32 s{d+1}, s{p+1}, 0xffff\ns_mov_b32 s{d+2}, {size:#x}\ns_mov_b32 s{d+3}, 0x20000")

def selectors(a):
    a("""v_and_b32 v56, 1, v1
v_cmp_eq_u32 vcc, 1, v56
v_mov_b32 v57, 0x0c0c0100
v_mov_b32 v58, 0x01000c0c
v_mov_b32 v59, 0x0c0c0302
v_mov_b32 v60, 0x03020c0c
v_cndmask_b32 v57, v57, v58, vcc
v_cndmask_b32 v59, v59, v60, vcc
v_mov_b32 v58, 0x0c0c0c0c
v_bfe_u32 v56, v1, 1, 2""")
    for w in range(4):
        a(f"v_cmp_eq_u32 vcc, {w}, v56\nv_cndmask_b32 v{8+w}, v58, v57, vcc\nv_cndmask_b32 v{12+w}, v58, v59, vcc")

def perm(dst, w, src, par): return f"v_perm_b32 v{dst+w}, {src}, {src}, v{8+4*par+w}"
def frag(a, dst, src, par):
    for w in range(4): a(perm(dst,w,src,par))

QR=0
QB=32768
PART=8192; ML=16384; OB=16640
LDS=33792
ACC=48; S=52; M=80; L=81

def slotreg(slot): return ("v",128+32*slot) if slot<4 else ("a",128+32*(slot-4))
def rr(k,b,n=4): return f"{k}[{b}:{b+n-1}]"
def issueK(a, slot):
    k,r=slotreg(slot)
    for s in range(4): a(f"buffer_load_dwordx4 {rr(k,r+4*s)}, v4, s[20:23], s58 offen offset:{64*s} nt")
def issueV(a, slot):
    k,r=slotreg(slot); r+=16
    for t in range(4): a(f"buffer_load_dwordx4 {rr(k,r+4*t)}, v5, s[24:27], s58 offen offset:{256*t} nt")
    a("s_add_u32 s58, s58, 0x4000")
def issue(a,slot): issueK(a,slot); issueV(a,slot)

def block(a, slot, N, reload=True):
    k,kb=slotreg(slot); vb=kb+16
    a(f"s_waitcnt vmcnt({N})")
    for s in range(4):
        a(f"v_mfma_f32_16x16x32_bf16 v[{S}:{S+3}], {rr(k,kb+4*s)}, v[{16+4*s}:{19+4*s}], {'v[%d:%d]'%(S,S+3) if s else 0}")
    if reload: issueK(a,slot)
    a(f"""v_max3_f32 v56, v{S}, v{S+1}, v{S+2}
v_max_f32 v56, v56, v{S+3}
v_mov_b32 v57, v56
v_permlane16_swap_b32 v56, v57
v_max_f32 v56, v56, v57
v_mov_b32 v57, v56
v_permlane32_swap_b32 v56, v57
v_max_f32 v56, v56, v57
v_mul_f32 v56, s59, v56
v_max_f32 v56, v56, v{M}
v_sub_f32 v57, v{M}, v56
v_mov_b32 v{M}, v56
v_exp_f32 v57, v57""")
    for r in range(4): a(f"v_fma_f32 v{58+r}, v{S+r}, s59, -v56")
    for r in range(4): a(f"v_exp_f32 v{58+r}, v{58+r}")
    for r in range(4): a(f"v_mul_f32 v{ACC+r}, v{ACC+r}, v57")
    a(f"""v_cvt_pk_bf16_f32 v62, v58, v59
v_cvt_pk_bf16_f32 v63, v60, v61
v_add_f32 v58, v58, v59
v_add_f32 v60, v60, v61
v_add_f32 v58, v58, v60
v_fma_f32 v{L}, v{L}, v57, v58""")
    for t in range(4): frag(a,64+4*t,f"v{62+(t>>1)}",t&1)
    a(f"s_waitcnt vmcnt({N})")
    for t in range(4):
        a(f"v_mfma_f32_16x16x32_bf16 v[{ACC}:{ACC+3}], {rr(k,vb+4*t)}, v[{64+4*t}:{67+4*t}], v[{ACC}:{ACC+3}]")
    if reload: issueV(a,slot)

def pair_end(a, p):
    a(f"""v_mov_b32 v57, v{L}
v_permlane16_swap_b32 v{L}, v57
v_add_f32 v{L}, v{L}, v57
v_mov_b32 v57, v{L}
v_permlane32_swap_b32 v{L}, v57
v_add_f32 v{L}, v{L}, v57
ds_write_b128 v6, v[{ACC}:{ACC+3}] offset:{PART}
ds_write_b64 v7, v[{M}:{M+1}] offset:{ML}""")
    if p==0: a("v_xor_b32 v6, 0x1000, v6\nv_xor_b32 v7, 32, v7")

def init_state(a):
    a(f"v_mov_b32 v{M}, {NEG:#x}\nv_mov_b32 v{L}, 0")
    for r in range(4): a(f"v_mov_b32 v{ACC+r}, 0")

def gen(a):
    a(f""".globl {NAME}
.p2align 8
.type {NAME},@function
{NAME}:
s_cmp_ge_u32 s2, 256
s_cbranch_scc1 L_end
s_load_dwordx16 s[4:19], s[0:1], 0""")
    stamp(a,0)
    a("""v_and_b32 v1, 63, v0
v_lshrrev_b32 v4, 6, v0
v_and_b32 v2, 15, v0
v_bfe_u32 v3, v0, 4, 2
v_readfirstlane_b32 s54, v4
s_and_b32 s52, s2, 7
s_lshl_b32 s52, s52, 2
s_bfe_u32 s53, s2, 0x20003
s_add_u32 s52, s52, s53
s_lshr_b32 s53, s2, 5
v_lshlrev_b32 v82, 4, v1
v_lshlrev_b32 v56, 4, v2
v_lshl_add_u32 v89, v3, 16, v56
v_mov_b32 v83, v89
v_lshl_add_u32 v91, v3, 13, v56
v_lshl_add_u32 v5, v3, 10, v56
v_lshlrev_b32 v4, 8, v2
v_lshl_add_u32 v4, v3, 4, v4
v_bfe_u32 v57, v1, 3, 1
v_lshlrev_b32 v90, 11, v57
v_lshl_add_u32 v90, v3, 4, v90
v_mov_b32 v64, -1
v_mov_b32 v65, -1
v_mov_b32 v66, -1
v_mov_b32 v67, -1
s_lshl_b32 s56, s53, 20
s_lshl_b32 s55, s54, 18
s_add_u32 s56, s56, s55
s_lshl_b32 s55, s52, 8
s_add_u32 s56, s56, s55
s_lshl_b32 s57, s53, 8
s_lshl_b32 s55, s54, 6
s_add_u32 s57, s57, s55
s_lshl_b32 s60, s53, 6
s_add_u32 s60, s60, s52
s_lshl_b32 s60, s60, 19
s_lshl_b32 s55, s54, 12
s_add_u32 s60, s60, s55
s_and_b32 s64, s52, 1
s_lshl_b32 s55, s64, 24
s_xor_b32 s60, s60, s55
s_mov_b32 s58, s60
s_lshl_b32 s66, s53, 18
s_lshl_b32 s55, s54, 16
s_add_u32 s66, s66, s55
s_lshl_b32 s55, s52, 8
s_add_u32 s66, s66, s55""")
    a(f"s_add_u32 s66, s66, {OPOFF:#x}\ns_add_u32 s67, s66, 0x8000\ns_waitcnt lgkmcnt(0)")
    srd(a,28,10,0x800000); srd(a,36,4,0x8000)
    for t in range(8):
        a(f"buffer_load_dwordx4 a[{4*t}:{4*t+3}], v89, s[28:31], s56 offen nt\ns_add_u32 s56, s56, 0x2000")
    for bq in range(8):
        a(f"buffer_load_dwordx4 v[{16+4*bq}:{19+4*bq}], v90, s[36:39], s57 offen nt\ns_add_u32 s57, s57, 0x1000")
    srd(a,20,6,0x10000000); srd(a,24,8,0x10000000)
    issue(a,0); issue(a,1)
    srd(a,40,18,0x400000)
    a(f"buffer_store_dwordx4 v[64:67], v91, s[40:43], s66 offen {XPOL}\nbuffer_store_dwordx4 v[64:67], v91, s[40:43], s67 offen {XPOL}")
    srd(a,32,12,0x800000); srd(a,44,14,0x8000); srd(a,48,16,0x100)
    selectors(a)
    a(f"""s_mov_b32 s59, {SCALE:#x}
s_lshl_b32 s55, s54, 13
v_add_u32 v6, s55, v82
s_lshl_b32 s55, s54, 11
v_add_u32 v7, s55, v82
s_lshl_b32 s56, s52, 16
s_lshl_b32 s55, s54, 14
s_add_u32 s56, s56, s55
s_lshl_b32 s55, s53, 10
s_add_u32 s56, s56, s55
s_add_u32 s57, s56, 0x2000
s_waitcnt vmcnt(18)""")
    stamp(a,1)
    seq=[(t,bq) for t in range(8) for bq in range(8)]
    def fr(i):
        t,bq=seq[i]; return [perm(64+4*(i%4),w,f"v{16+4*bq+(t>>1)}",t&1) for w in range(4)]
    for x in fr(0)+fr(1): a(x)
    for i,(t,bq) in enumerate(seq):
        acc=f"a[{32+4*bq}:{35+4*bq}]"; f=64+4*(i%4)
        a(f"v_mfma_f32_16x16x32_bf16 {acc}, a[{4*t}:{4*t+3}], v[{f}:{f+3}], {acc if t else 0}")
        if i+2<64:
            for x in fr(i+2): a(x)
    for bq in range(8):
        a(f"ds_write_b128 v6, a[{32+4*bq}:{35+4*bq}] offset:{QR+1024*bq}")
    a("s_waitcnt lgkmcnt(0)\ns_barrier")
    for u in range(2):
        for w in range(4):
            r=96+16*u+4*w
            a(f"ds_read_b128 v[{r}:{r+3}], v7 offset:{QR+8192*w+1024*u}")
    a("s_waitcnt lgkmcnt(0)")
    for u in range(2):
        b=96+16*u
        for r in range(4):
            a(f"v_add_f32 v{b+r}, v{b+r}, v{b+4+r}\nv_add_f32 v{b+8+r}, v{b+8+r}, v{b+12+r}")
        for r in range(4):
            a(f"v_add_f32 v{b+r}, v{b+r}, v{b+8+r}")
        a(f"buffer_store_dwordx4 v[{b}:{b+3}], v82, s[40:43], s{56+u} offen {XPOL}")
    stamp(a,2)
    issue(a,2)
    a(f"""s_lshl_b32 s61, s52, 18
s_lshl_b32 s55, s54, 9
s_add_u32 s61, s61, s55
v_bfe_u32 v84, v1, 3, 1
v_lshlrev_b32 v84, 8, v84
v_lshl_add_u32 v84, v3, 6, v84
v_and_b32 v85, 7, v1
v_lshl_add_u32 v85, v85, 1, v84
v_add_u32 v84, s55, v84
v_add_u32 v86, s55, v85
s_lshl_b32 s55, s64, 8
v_lshlrev_b32 v87, 4, v3
v_add_u32 v87, s55, v87
v_xor_b32 v88, 0x100, v87
s_lshl_b32 s55, s54, 10
s_lshl_b32 s56, s64, 12
s_add_u32 s55, s55, s56
v_add_u32 v6, s55, v82
s_lshl_b32 s55, s54, 3
s_lshl_b32 s56, s64, 5
s_add_u32 s55, s55, s56
v_mov_b32 v7, s55
s_lshl_b32 s68, s52, 3
s_add_u32 s69, s68, s53
v_mov_b32 v94, 0
v_mov_b32 v95, 1
s_lshl_b32 s56, s52, 16
s_lshl_b32 s55, s53, 13
s_add_u32 s56, s56, s55
s_add_u32 s57, s56, 0x1000
s_cmp_eq_u32 s54, 0
s_cselect_b32 s65, 0, 3
s_waitcnt vmcnt(8)
s_barrier
s_cmp_lg_u32 s54, 0
s_cbranch_scc1 L_noflag
s_mov_b64 exec, 1
buffer_store_byte v95, v94, s[48:51], s69 offen {FPOL}
s_mov_b64 exec, -1
L_noflag:""")
    stamp(a,3)
    for r in range(3,8):
        a("s_waitcnt vmcnt(0)\ns_call_b64 s[62:63], L_step")
        issue(a,r)
    a(f"""s_mov_b32 s70, {SPIN}
L_qspin:
s_cmp_eq_u32 s65, 3
s_cbranch_scc1 L_qdone
s_waitcnt vmcnt(0)
s_call_b64 s[62:63], L_step
s_sub_u32 s70, s70, 1
s_cbranch_scc0 L_qspin
L_qdone:
s_waitcnt lgkmcnt(0)
s_barrier""")
    for p in range(2):
        for s in range(4):
            r=16+16*p+4*s
            a(f"ds_read_b128 v[{r}:{r+3}], v{87+p} offset:{QB+64*s}")
    init_state(a)
    a("s_waitcnt lgkmcnt(0)")
    stamp(a,4)
    wo=0
    for i in range(16):
        if i==7: a("s_xor_b32 s58, s60, 0x1000000")
        if i==15: a("s_mov_b32 s58, 0x20000000")
        if i>=2:
            for u in range(5):
                if wo<64:
                    n=wo; wo+=1
                    a(f"buffer_load_dwordx4 a[{4*n}:{4*n+3}], v83, s[32:35], s61 offen offset:{256*(n&1)} nt")
                    if n&1: a("s_add_u32 s61, s61, 0x800")
        if i==14: a(f"v_lshlrev_b32 v56, 2, v1\nbuffer_load_dword v92, v56, s[48:51], 0 offen {FPOL}")
        a(f"s_call_b64 s[62:63], {'L_bodyA' if i==1 else 'L_bodyV'}")
        if i==7:
            pair_end(a,0); init_state(a)
            for r in range(16): a(f"v_mov_b32 v{16+r}, v{32+r}")
    assert wo==64
    stamp(a,5)
    pair_end(a,1)
    a(f"""v_bfe_u32 v56, v1, 3, 1
v_lshlrev_b32 v57, 12, v56
v_and_b32 v58, 0x37, v1
v_lshl_add_u32 v57, v58, 4, v57
v_lshlrev_b32 v56, 5, v56
s_waitcnt lgkmcnt(0)
s_barrier
ds_read_b128 v[16:19], v56 offset:{ML}
ds_read_b128 v[20:23], v56 offset:{ML+16}""")
    for w in range(4): a(f"ds_read_b128 v[{64+4*w}:{67+4*w}], v57 offset:{PART+1024*w}")
    a("""s_waitcnt lgkmcnt(4)
v_max3_f32 v24, v16, v18, v20
v_max_f32 v24, v24, v22
v_sub_f32 v16, v16, v24
v_sub_f32 v18, v18, v24
v_sub_f32 v20, v20, v24
v_sub_f32 v22, v22, v24
v_exp_f32 v16, v16
v_exp_f32 v18, v18
v_exp_f32 v20, v20
v_exp_f32 v22, v22
v_mul_f32 v25, v16, v17
v_fmac_f32 v25, v18, v19
v_fmac_f32 v25, v20, v21
v_fmac_f32 v25, v22, v23
v_rcp_f32 v25, v25
v_mul_f32 v16, v16, v25
v_mul_f32 v18, v18, v25
v_mul_f32 v20, v20, v25
v_mul_f32 v22, v22, v25
s_waitcnt lgkmcnt(0)""")
    for r in range(4): a(f"v_mul_f32 v{64+r}, v{64+r}, v16")
    for w in range(1,4):
        for r in range(4): a(f"v_fmac_f32 v{64+r}, v{64+4*w+r}, v{16+2*w}")
    a(f"""v_cvt_pk_bf16_f32 v62, v64, v65
v_cvt_pk_bf16_f32 v63, v66, v67
ds_write_b16 v86, v62 offset:{OB}
ds_write_b16_d16_hi v86, v62 offset:{OB+16}
ds_write_b16 v86, v63 offset:{OB+32}
ds_write_b16_d16_hi v86, v63 offset:{OB+48}
s_waitcnt lgkmcnt(0)""")
    for u in range(4): a(f"ds_read_b128 v[{16+4*u}:{19+4*u}], v84 offset:{OB+16*u}")
    a("s_waitcnt vmcnt(0) lgkmcnt(0)")
    def fo(t): return [perm(64+4*(t%4),w,f"v{16+(t>>1)}",t&1) for w in range(4)]
    for x in fo(0)+fo(1): a(x)
    for t in range(32):
        f=64+4*(t%4); nx=fo(t+2) if t+2<32 else []
        for cg in range(2):
            n=2*t+cg; acc=f"v[{48+4*cg}:{51+4*cg}]"
            a(f"v_mfma_f32_16x16x32_bf16 {acc}, a[{4*n}:{4*n+3}], v[{f}:{f+3}], {acc if t else 0}")
            for x in nx[2*cg:2*cg+2]: a(x)
    a(f"buffer_store_dwordx4 v[48:51], v91, s[40:43], s66 offen {XPOL}\nbuffer_store_dwordx4 v[52:55], v91, s[40:43], s67 offen {XPOL}")
    stamp(a,6)
    a("s_cmp_lg_u32 s54, 0")
    a(f"s_cbranch_scc1 {'L_stamps' if STAMP else 'L_end'}")
    a(f"""s_lshl_b32 s56, s53, 18
s_lshl_b32 s55, s52, 13
s_add_u32 s56, s56, s55
s_add_u32 s56, s56, {OPOFF:#x}
s_add_u32 s57, s56, 0x1000
s_mov_b32 s69, {SPIN}
s_mov_b32 s55, 0x01010101
v_lshlrev_b32 v56, 2, v1
L_fchk:
v_cmp_ne_u32 vcc, s55, v92
s_cbranch_vccz L_fok
buffer_load_dword v92, v56, s[48:51], 0 offen {FPOL}
s_waitcnt vmcnt(0)
s_sub_u32 s69, s69, 1
s_cbranch_scc0 L_fchk
L_fok:""")
    for i in range(8): a(f"s_mov_b64 s[{70+2*i}:{71+2*i}], -1")
    a(f"""v_bfe_u32 v5, v1, 3, 1
v_lshlrev_b32 v5, 11, v5
v_lshl_add_u32 v5, v3, 4, v5
v_and_b32 v6, 7, v1
v_lshl_add_u32 v5, v6, 1, v5
s_lshl_b32 s60, s53, 12
s_lshl_b32 s55, s52, 6
s_add_u32 s60, s60, s55
s_mov_b32 s69, {SPIN}
L_poll:""")
    for i in range(8):
        a(f"""s_mov_b64 exec, s[{70+2*i}:{71+2*i}]
s_cbranch_execz L_sk{i}
buffer_load_dwordx4 v[{16+4*i}:{19+4*i}], v82, s[40:43], s{56+(i>>2)} offen offset:{1024*(i&3)} {XPOL}
L_sk{i}:""")
    a("s_mov_b64 exec, -1\ns_waitcnt vmcnt(0)")
    for i in range(8):
        b=16+4*i
        a(f"v_max3_u32 v{56+i}, v{b}, v{b+1}, v{b+2}")
    for i in range(8):
        a(f"v_max_u32 v{56+i}, v{56+i}, v{19+4*i}")
    for i in range(8):
        a(f"v_cmp_eq_u32 s[{70+2*i}:{71+2*i}], -1, v{56+i}")
    a("""s_or_b64 s[62:63], s[70:71], s[72:73]
s_or_b64 s[66:67], s[74:75], s[76:77]
s_or_b64 s[62:63], s[62:63], s[78:79]
s_or_b64 s[66:67], s[66:67], s[80:81]
s_or_b64 s[62:63], s[62:63], s[82:83]
s_or_b64 s[66:67], s[66:67], s[84:85]
s_or_b64 s[62:63], s[62:63], s[66:67]
s_cbranch_scc0 L_pdone
s_sub_u32 s69, s69, 1
s_cbranch_scc0 L_poll
L_pdone:""")
    for st in (4,2,1):
        for i in range(st):
            for r in range(4): a(f"v_add_f32 v{16+4*i+r}, v{16+4*i+r}, v{16+4*(i+st)+r}")
    a("""v_permlane32_swap_b32 v16, v18
v_permlane32_swap_b32 v17, v19
v_add_f32 v16, v16, v18
v_add_f32 v17, v17, v19
v_permlane16_swap_b32 v16, v17
v_add_f32 v16, v16, v17
v_cvt_pk_bf16_f32 v16, v16, v16
buffer_store_short v16, v5, s[44:47], s60 offen""")
    if STAMP:
        a("L_stamps:\ns_waitcnt vmcnt(0)")
        stamp(a,7)
        a("""s_lshl_b32 s55, s2, 2
s_add_u32 s55, s55, s54
s_lshl_b32 s55, s55, 5
s_add_u32 s55, s55, 0x800000
s_waitcnt lgkmcnt(0)""")
        for i in range(8): a(f"v_mov_b32 v{16+i}, s{86+2*i}")
        a("""v_mov_b32 v24, s55
global_store_dwordx4 v24, v[16:19], s[18:19]
global_store_dwordx4 v24, v[20:23], s[18:19] offset:16""")
    a("L_end:\ns_endpgm")
    a(f"""L_step:
s_cmp_eq_u32 s65, 3
s_cbranch_scc1 L_sret
s_cmp_eq_u32 s65, 2
s_cbranch_scc1 L_s2
s_cmp_eq_u32 s65, 0
s_cbranch_scc1 L_spoll
v_and_b32 v92, v92, v93
v_readfirstlane_b32 s55, v92
s_cmp_eq_u32 s55, 0x01010101
s_cbranch_scc0 L_spoll""")
    for i in range(8):
        a(f"buffer_load_dwordx4 v[{96+4*i}:{99+4*i}], v82, s[40:43], s{56+(i>>2)} offen offset:{1024*(i&3)} {XPOL}")
    a(f"""s_mov_b32 s65, 2
s_setpc_b64 s[62:63]
L_spoll:
buffer_load_dwordx2 v[92:93], v94, s[48:51], s68 offen {FPOL}
s_mov_b32 s65, 1
s_setpc_b64 s[62:63]
L_s2:""")
    for st in (4,2,1):
        for i in range(st):
            for r in range(4): a(f"v_add_f32 v{96+4*i+r}, v{96+4*i+r}, v{96+4*(i+st)+r}")
    a(f"""v_cvt_pk_bf16_f32 v62, v96, v97
v_cvt_pk_bf16_f32 v63, v98, v99
ds_write_b16 v85, v62 offset:{QB}
ds_write_b16_d16_hi v85, v62 offset:{QB+16}
ds_write_b16 v85, v63 offset:{QB+32}
ds_write_b16_d16_hi v85, v63 offset:{QB+48}
s_mov_b32 s65, 3
L_sret:
s_setpc_b64 s[62:63]""")
    a("L_bodyV:")
    for d in range(4): block(a,d,28)
    a("s_setpc_b64 s[62:63]")
    a("L_bodyA:")
    for d in range(4): block(a,4+d,28,reload=False)
    a("s_setpc_b64 s[62:63]")

def main(out):
    a=Asm(); gen(a)
    t=HDR+f"""; @launch grid=(256,1,1) block=(256,1,1) lds={LDS}
.amdgcn_target "amdgcn-amd-amdhsa--gfx950"
.text
"""+a.finalize()+f""".section .rodata,"a"
.p2align 6
.amdhsa_kernel {NAME}
  .amdhsa_next_free_vgpr 512
  .amdhsa_next_free_sgpr 102
  .amdhsa_accum_offset 256
  .amdhsa_group_segment_fixed_size 0
  .amdhsa_kernarg_size 64
  .amdhsa_user_sgpr_count 2
  .amdhsa_user_sgpr_kernarg_segment_ptr 1
  .amdhsa_system_sgpr_workgroup_id_x 1
.end_amdhsa_kernel
"""
    open(out,"w").write(t)
main(sys.argv[1])
```

```python
import struct, math, sys, os
from emit import Asm

def f2u(f): return struct.unpack("<I", struct.pack("<f", f))[0]
SCALE = f2u(math.log2(math.e)/math.sqrt(128.0))
NEG = f2u(-1.0e30)
OPOFF = 0x200000
STAMP=int(os.environ.get("STAMP","0"))
XPOL=os.environ.get("XPOL","sc1")
FPOL=os.environ.get("FPOL","sc1")
KPOL=os.environ.get("KPOL","nt"); VPOL=os.environ.get("VPOL","nt"); WQPOL=os.environ.get("WQPOL","nt"); WOPOL=os.environ.get("WOPOL","nt")
SPIN=int(os.environ.get("SPIN","20000"))
NAME="standalone__mha_block_cached__sampling_kernel"

HDR = """; Kernarg layout for this problem (64 bytes, ptrs only, base s[0:1]):
"""
def stamp(a,i):
    if STAMP: a(f"s_memrealtime s[{86+2*i}:{87+2*i}]")

def srd(a, d, p, size):
    a(f"s_mov_b32 s{d}, s{p}\ns_and_b32 s{d+1}, s{p+1}, 0xffff\ns_mov_b32 s{d+2}, {size:#x}\ns_mov_b32 s{d+3}, 0x20000")

def selectors(a):
    a("""v_and_b32 v56, 1, v1
v_cmp_eq_u32 vcc, 1, v56
v_mov_b32 v57, 0x0c0c0100
v_mov_b32 v58, 0x01000c0c
v_mov_b32 v59, 0x0c0c0302
v_mov_b32 v60, 0x03020c0c
v_cndmask_b32 v57, v57, v58, vcc
v_cndmask_b32 v59, v59, v60, vcc
v_mov_b32 v58, 0x0c0c0c0c
v_bfe_u32 v56, v1, 1, 2""")
    for w in range(4):
        a(f"v_cmp_eq_u32 vcc, {w}, v56\nv_cndmask_b32 v{8+w}, v58, v57, vcc\nv_cndmask_b32 v{12+w}, v58, v59, vcc")

def perm(dst, w, src, par): return f"v_perm_b32 v{dst+w}, {src}, {src}, v{8+4*par+w}"
def frag(a, dst, src, par):
    for w in range(4): a(perm(dst,w,src,par))

QR=0
QB=32768
PART=8192; ML=16384; OB=16640
LDS=33792
ACC=48; S=52; M=80; L=81

def slotreg(slot): return ("v",128+32*slot) if slot<4 else ("a",128+32*(slot-4))
def rr(k,b,n=4): return f"{k}[{b}:{b+n-1}]"
def issueK(a, slot):
    k,r=slotreg(slot)
    for s in range(4): a(f"buffer_load_dwordx4 {rr(k,r+4*s)}, v4, s[20:23], s58 offen offset:{64*s} {KPOL}")
def issueV(a, slot):
    k,r=slotreg(slot); r+=16
    for t in range(4): a(f"buffer_load_dwordx4 {rr(k,r+4*t)}, v5, s[24:27], s58 offen offset:{256*t} {VPOL}")
    a("s_add_u32 s58, s58, 0x4000")
def issue(a,slot): issueK(a,slot); issueV(a,slot)

def block(a, slot, N, reload=True):
    k,kb=slotreg(slot); vb=kb+16
    a(f"s_waitcnt vmcnt({N})")
    for s in range(4):
        a(f"v_mfma_f32_16x16x32_bf16 v[{S}:{S+3}], {rr(k,kb+4*s)}, v[{16+4*s}:{19+4*s}], {'v[%d:%d]'%(S,S+3) if s else 0}")
    if reload: issueK(a,slot)
    a(f"""v_max3_f32 v56, v{S}, v{S+1}, v{S+2}
v_max_f32 v56, v56, v{S+3}
v_mov_b32 v57, v56
v_permlane16_swap_b32 v56, v57
v_max_f32 v56, v56, v57
v_mov_b32 v57, v56
v_permlane32_swap_b32 v56, v57
v_max_f32 v56, v56, v57
v_mul_f32 v56, s59, v56
v_max_f32 v56, v56, v{M}
v_sub_f32 v57, v{M}, v56
v_mov_b32 v{M}, v56
v_exp_f32 v57, v57""")
    for r in range(4): a(f"v_fma_f32 v{58+r}, v{S+r}, s59, -v56")
    for r in range(4): a(f"v_exp_f32 v{58+r}, v{58+r}")
    for r in range(4): a(f"v_mul_f32 v{ACC+r}, v{ACC+r}, v57")
    a(f"""v_cvt_pk_bf16_f32 v62, v58, v59
v_cvt_pk_bf16_f32 v63, v60, v61
v_add_f32 v58, v58, v59
v_add_f32 v60, v60, v61
v_add_f32 v58, v58, v60
v_fma_f32 v{L}, v{L}, v57, v58""")
    for t in range(4): frag(a,64+4*t,f"v{62+(t>>1)}",t&1)
    a(f"s_waitcnt vmcnt({N})")
    for t in range(4):
        a(f"v_mfma_f32_16x16x32_bf16 v[{ACC}:{ACC+3}], {rr(k,vb+4*t)}, v[{64+4*t}:{67+4*t}], v[{ACC}:{ACC+3}]")
    if reload: issueV(a,slot)

def pair_end(a, p):
    a(f"""v_mov_b32 v57, v{L}
v_permlane16_swap_b32 v{L}, v57
v_add_f32 v{L}, v{L}, v57
v_mov_b32 v57, v{L}
v_permlane32_swap_b32 v{L}, v57
v_add_f32 v{L}, v{L}, v57
ds_write_b128 v6, v[{ACC}:{ACC+3}] offset:{PART}
ds_write_b64 v7, v[{M}:{M+1}] offset:{ML}""")
    if p==0: a("v_xor_b32 v6, 0x1000, v6\nv_xor_b32 v7, 32, v7")

def init_state(a):
    a(f"v_mov_b32 v{M}, {NEG:#x}\nv_mov_b32 v{L}, 0")
    for r in range(4): a(f"v_mov_b32 v{ACC+r}, 0")

def gen(a):
    a(f""".globl {NAME}
.p2align 8
.type {NAME},@function
{NAME}:
s_cmp_ge_u32 s2, 256
s_cbranch_scc1 L_end
s_load_dwordx16 s[4:19], s[0:1], 0""")
    stamp(a,0)
    a("""v_and_b32 v1, 63, v0
v_lshrrev_b32 v4, 6, v0
v_and_b32 v2, 15, v0
v_bfe_u32 v3, v0, 4, 2
v_readfirstlane_b32 s54, v4
s_and_b32 s52, s2, 7
s_lshl_b32 s52, s52, 2
s_bfe_u32 s53, s2, 0x20003
s_add_u32 s52, s52, s53
s_lshr_b32 s53, s2, 5
v_lshlrev_b32 v82, 4, v1
v_lshlrev_b32 v56, 4, v2
v_lshl_add_u32 v89, v3, 16, v56
v_mov_b32 v83, v89
v_lshl_add_u32 v91, v3, 13, v56
v_lshl_add_u32 v5, v3, 10, v56
v_lshlrev_b32 v4, 8, v2
v_lshl_add_u32 v4, v3, 4, v4
v_bfe_u32 v57, v1, 3, 1
v_lshlrev_b32 v90, 11, v57
v_lshl_add_u32 v90, v3, 4, v90
v_mov_b32 v64, -1
v_mov_b32 v65, -1
v_mov_b32 v66, -1
v_mov_b32 v67, -1
s_lshl_b32 s56, s53, 20
s_lshl_b32 s55, s54, 18
s_add_u32 s56, s56, s55
s_lshl_b32 s55, s52, 8
s_add_u32 s56, s56, s55
s_lshl_b32 s57, s53, 8
s_lshl_b32 s55, s54, 6
s_add_u32 s57, s57, s55
s_lshl_b32 s60, s53, 6
s_add_u32 s60, s60, s52
s_lshl_b32 s60, s60, 19
s_lshl_b32 s55, s54, 12
s_add_u32 s60, s60, s55
s_and_b32 s64, s52, 1
s_lshl_b32 s55, s64, 24
s_xor_b32 s60, s60, s55
s_mov_b32 s58, s60
s_lshl_b32 s66, s53, 18
s_lshl_b32 s55, s54, 16
s_add_u32 s66, s66, s55
s_lshl_b32 s55, s52, 8
s_add_u32 s66, s66, s55""")
    a(f"s_add_u32 s66, s66, {OPOFF:#x}\ns_add_u32 s67, s66, 0x8000\ns_waitcnt lgkmcnt(0)")
    srd(a,28,10,0x800000); srd(a,36,4,0x8000)
    for t in range(8):
        a(f"buffer_load_dwordx4 a[{4*t}:{4*t+3}], v89, s[28:31], s56 offen {WQPOL}\ns_add_u32 s56, s56, 0x2000")
    for bq in range(8):
        a(f"buffer_load_dwordx4 v[{16+4*bq}:{19+4*bq}], v90, s[36:39], s57 offen {WQPOL}\ns_add_u32 s57, s57, 0x1000")
    srd(a,20,6,0x10000000); srd(a,24,8,0x10000000)
    issue(a,0); issue(a,1)
    srd(a,40,18,0x400000)
    a(f"buffer_store_dwordx4 v[64:67], v91, s[40:43], s66 offen {XPOL}\nbuffer_store_dwordx4 v[64:67], v91, s[40:43], s67 offen {XPOL}")
    srd(a,32,12,0x800000); srd(a,44,14,0x8000); srd(a,48,16,0x100)
    selectors(a)
    a(f"""s_mov_b32 s59, {SCALE:#x}
s_lshl_b32 s55, s54, 13
v_add_u32 v6, s55, v82
s_lshl_b32 s55, s54, 11
v_add_u32 v7, s55, v82
s_lshl_b32 s56, s52, 16
s_lshl_b32 s55, s54, 14
s_add_u32 s56, s56, s55
s_lshl_b32 s55, s53, 10
s_add_u32 s56, s56, s55
s_add_u32 s57, s56, 0x2000
s_waitcnt vmcnt(18)""")
    stamp(a,1)
    seq=[(t,bq) for t in range(8) for bq in range(8)]
    def fr(i):
        t,bq=seq[i]; return [perm(64+4*(i%4),w,f"v{16+4*bq+(t>>1)}",t&1) for w in range(4)]
    for x in fr(0)+fr(1): a(x)
    for i,(t,bq) in enumerate(seq):
        acc=f"a[{32+4*bq}:{35+4*bq}]"; f=64+4*(i%4)
        a(f"v_mfma_f32_16x16x32_bf16 {acc}, a[{4*t}:{4*t+3}], v[{f}:{f+3}], {acc if t else 0}")
        if i+2<64:
            for x in fr(i+2): a(x)
    for bq in range(8):
        a(f"ds_write_b128 v6, a[{32+4*bq}:{35+4*bq}] offset:{QR+1024*bq}")
    a("s_waitcnt lgkmcnt(0)\ns_barrier")
    for u in range(2):
        for w in range(4):
            r=96+16*u+4*w
            a(f"ds_read_b128 v[{r}:{r+3}], v7 offset:{QR+8192*w+1024*u}")
    a("s_waitcnt lgkmcnt(0)")
    for u in range(2):
        b=96+16*u
        for r in range(4):
            a(f"v_add_f32 v{b+r}, v{b+r}, v{b+4+r}\nv_add_f32 v{b+8+r}, v{b+8+r}, v{b+12+r}")
        for r in range(4):
            a(f"v_add_f32 v{b+r}, v{b+r}, v{b+8+r}")
        a(f"buffer_store_dwordx4 v[{b}:{b+3}], v82, s[40:43], s{56+u} offen {XPOL}")
    stamp(a,2)
    issue(a,2)
    a(f"""s_lshl_b32 s61, s52, 18
s_lshl_b32 s55, s54, 9
s_add_u32 s61, s61, s55
v_bfe_u32 v84, v1, 3, 1
v_lshlrev_b32 v84, 8, v84
v_lshl_add_u32 v84, v3, 6, v84
v_and_b32 v85, 7, v1
v_lshl_add_u32 v85, v85, 1, v84
v_add_u32 v84, s55, v84
v_add_u32 v86, s55, v85
s_lshl_b32 s55, s64, 8
v_lshlrev_b32 v87, 4, v3
v_add_u32 v87, s55, v87
v_xor_b32 v88, 0x100, v87
s_lshl_b32 s55, s54, 10
s_lshl_b32 s56, s64, 12
s_add_u32 s55, s55, s56
v_add_u32 v6, s55, v82
s_lshl_b32 s55, s54, 3
s_lshl_b32 s56, s64, 5
s_add_u32 s55, s55, s56
v_mov_b32 v7, s55
s_lshl_b32 s68, s52, 3
s_add_u32 s69, s68, s53
v_mov_b32 v94, 0
v_mov_b32 v95, 1
s_lshl_b32 s56, s52, 16
s_lshl_b32 s55, s53, 13
s_add_u32 s56, s56, s55
s_add_u32 s57, s56, 0x1000
s_cmp_eq_u32 s54, 0
s_cselect_b32 s65, 0, 3
s_waitcnt vmcnt(8)
s_barrier
s_cmp_lg_u32 s54, 0
s_cbranch_scc1 L_noflag
s_mov_b64 exec, 1
buffer_store_byte v95, v94, s[48:51], s69 offen {FPOL}
s_mov_b64 exec, -1
L_noflag:""")
    stamp(a,3)
    for r in range(3,8):
        a("s_waitcnt vmcnt(0)\ns_call_b64 s[62:63], L_step")
        issue(a,r)
    a(f"""s_mov_b32 s70, {SPIN}
L_qspin:
s_cmp_eq_u32 s65, 3
s_cbranch_scc1 L_qdone
s_waitcnt vmcnt(0)
s_call_b64 s[62:63], L_step
s_sub_u32 s70, s70, 1
s_cbranch_scc0 L_qspin
L_qdone:
s_waitcnt lgkmcnt(0)
s_barrier""")
    for p in range(2):
        for s in range(4):
            r=16+16*p+4*s
            a(f"ds_read_b128 v[{r}:{r+3}], v{87+p} offset:{QB+64*s}")
    init_state(a)
    a("s_waitcnt lgkmcnt(0)")
    stamp(a,4)
    wo=0
    for i in range(16):
        if i==7: a("s_xor_b32 s58, s60, 0x1000000")
        if i==15: a("s_mov_b32 s58, 0x20000000")
        if i>=2:
            for u in range(5):
                if wo<64:
                    n=wo; wo+=1
                    a(f"buffer_load_dwordx4 a[{4*n}:{4*n+3}], v83, s[32:35], s61 offen offset:{256*(n&1)} {WOPOL}")
                    if n&1: a("s_add_u32 s61, s61, 0x800")
        if i==14: a(f"v_lshlrev_b32 v56, 2, v1\nbuffer_load_dword v92, v56, s[48:51], 0 offen {FPOL}")
        a(f"s_call_b64 s[62:63], {'L_bodyA' if i==1 else 'L_bodyV'}")
        if i==7:
            pair_end(a,0); init_state(a)
            for r in range(16): a(f"v_mov_b32 v{16+r}, v{32+r}")
    assert wo==64
    stamp(a,5)
    pair_end(a,1)
    a(f"""v_bfe_u32 v56, v1, 3, 1
v_lshlrev_b32 v57, 12, v56
v_and_b32 v58, 0x37, v1
v_lshl_add_u32 v57, v58, 4, v57
v_lshlrev_b32 v56, 5, v56
s_waitcnt lgkmcnt(0)
s_barrier
ds_read_b128 v[16:19], v56 offset:{ML}
ds_read_b128 v[20:23], v56 offset:{ML+16}""")
    for w in range(4): a(f"ds_read_b128 v[{64+4*w}:{67+4*w}], v57 offset:{PART+1024*w}")
    a("""s_waitcnt lgkmcnt(4)
v_max3_f32 v24, v16, v18, v20
v_max_f32 v24, v24, v22
v_sub_f32 v16, v16, v24
v_sub_f32 v18, v18, v24
v_sub_f32 v20, v20, v24
v_sub_f32 v22, v22, v24
v_exp_f32 v16, v16
v_exp_f32 v18, v18
v_exp_f32 v20, v20
v_exp_f32 v22, v22
v_mul_f32 v25, v16, v17
v_fmac_f32 v25, v18, v19
v_fmac_f32 v25, v20, v21
v_fmac_f32 v25, v22, v23
v_rcp_f32 v25, v25
v_mul_f32 v16, v16, v25
v_mul_f32 v18, v18, v25
v_mul_f32 v20, v20, v25
v_mul_f32 v22, v22, v25
s_waitcnt lgkmcnt(0)""")
    for r in range(4): a(f"v_mul_f32 v{64+r}, v{64+r}, v16")
    for w in range(1,4):
        for r in range(4): a(f"v_fmac_f32 v{64+r}, v{64+4*w+r}, v{16+2*w}")
    a(f"""v_cvt_pk_bf16_f32 v62, v64, v65
v_cvt_pk_bf16_f32 v63, v66, v67
ds_write_b16 v86, v62 offset:{OB}
ds_write_b16_d16_hi v86, v62 offset:{OB+16}
ds_write_b16 v86, v63 offset:{OB+32}
ds_write_b16_d16_hi v86, v63 offset:{OB+48}
s_waitcnt lgkmcnt(0)""")
    for u in range(4): a(f"ds_read_b128 v[{16+4*u}:{19+4*u}], v84 offset:{OB+16*u}")
    a("s_waitcnt vmcnt(0) lgkmcnt(0)")
    def fo(t): return [perm(64+4*(t%4),w,f"v{16+(t>>1)}",t&1) for w in range(4)]
    for x in fo(0)+fo(1): a(x)
    for t in range(32):
        f=64+4*(t%4); nx=fo(t+2) if t+2<32 else []
        for cg in range(2):
            n=2*t+cg; acc=f"v[{48+4*cg}:{51+4*cg}]"
            a(f"v_mfma_f32_16x16x32_bf16 {acc}, a[{4*n}:{4*n+3}], v[{f}:{f+3}], {acc if t else 0}")
            for x in nx[2*cg:2*cg+2]: a(x)
    a(f"buffer_store_dwordx4 v[48:51], v91, s[40:43], s66 offen {XPOL}\nbuffer_store_dwordx4 v[52:55], v91, s[40:43], s67 offen {XPOL}")
    stamp(a,6)
    a("s_cmp_lg_u32 s54, 0")
    a(f"s_cbranch_scc1 {'L_stamps' if STAMP else 'L_end'}")
    a(f"""s_lshl_b32 s56, s53, 18
s_lshl_b32 s55, s52, 13
s_add_u32 s56, s56, s55
s_add_u32 s56, s56, {OPOFF:#x}
s_add_u32 s57, s56, 0x1000
s_mov_b32 s69, {SPIN}
s_mov_b32 s55, 0x01010101
v_lshlrev_b32 v56, 2, v1
L_fchk:
v_cmp_ne_u32 vcc, s55, v92
s_cbranch_vccz L_fok
buffer_load_dword v92, v56, s[48:51], 0 offen {FPOL}
s_waitcnt vmcnt(0)
s_sub_u32 s69, s69, 1
s_cbranch_scc0 L_fchk
L_fok:""")
    for i in range(8): a(f"s_mov_b64 s[{70+2*i}:{71+2*i}], -1")
    a(f"""v_bfe_u32 v5, v1, 3, 1
v_lshlrev_b32 v5, 11, v5
v_lshl_add_u32 v5, v3, 4, v5
v_and_b32 v6, 7, v1
v_lshl_add_u32 v5, v6, 1, v5
s_lshl_b32 s60, s53, 12
s_lshl_b32 s55, s52, 6
s_add_u32 s60, s60, s55
s_mov_b32 s69, {SPIN}
L_poll:""")
    for i in range(8):
        a(f"""s_mov_b64 exec, s[{70+2*i}:{71+2*i}]
s_cbranch_execz L_sk{i}
buffer_load_dwordx4 v[{16+4*i}:{19+4*i}], v82, s[40:43], s{56+(i>>2)} offen offset:{1024*(i&3)} {XPOL}
L_sk{i}:""")
    a("s_mov_b64 exec, -1\ns_waitcnt vmcnt(0)")
    for i in range(8):
        b=16+4*i
        a(f"v_max3_u32 v{56+i}, v{b}, v{b+1}, v{b+2}")
    for i in range(8):
        a(f"v_max_u32 v{56+i}, v{56+i}, v{19+4*i}")
    for i in range(8):
        a(f"v_cmp_eq_u32 s[{70+2*i}:{71+2*i}], -1, v{56+i}")
    a("""s_or_b64 s[62:63], s[70:71], s[72:73]
s_or_b64 s[66:67], s[74:75], s[76:77]
s_or_b64 s[62:63], s[62:63], s[78:79]
s_or_b64 s[66:67], s[66:67], s[80:81]
s_or_b64 s[62:63], s[62:63], s[82:83]
s_or_b64 s[66:67], s[66:67], s[84:85]
s_or_b64 s[62:63], s[62:63], s[66:67]
s_cbranch_scc0 L_pdone
s_sub_u32 s69, s69, 1
s_cbranch_scc0 L_poll
L_pdone:""")
    for st in (4,2,1):
        for i in range(st):
            for r in range(4): a(f"v_add_f32 v{16+4*i+r}, v{16+4*i+r}, v{16+4*(i+st)+r}")
    a("""v_permlane32_swap_b32 v16, v18
v_permlane32_swap_b32 v17, v19
v_add_f32 v16, v16, v18
v_add_f32 v17, v17, v19
v_permlane16_swap_b32 v16, v17
v_add_f32 v16, v16, v17
v_cvt_pk_bf16_f32 v16, v16, v16
buffer_store_short v16, v5, s[44:47], s60 offen""")
    if STAMP:
        a("L_stamps:\ns_waitcnt vmcnt(0)")
        stamp(a,7)
        a("""s_lshl_b32 s55, s2, 2
s_add_u32 s55, s55, s54
s_lshl_b32 s55, s55, 5
s_add_u32 s55, s55, 0x800000
s_waitcnt lgkmcnt(0)""")
        for i in range(8): a(f"v_mov_b32 v{16+i}, s{86+2*i}")
        a("""v_mov_b32 v24, s55
global_store_dwordx4 v24, v[16:19], s[18:19]
global_store_dwordx4 v24, v[20:23], s[18:19] offset:16""")
    a("L_end:\ns_endpgm")
    a(f"""L_step:
s_cmp_eq_u32 s65, 3
s_cbranch_scc1 L_sret
s_cmp_eq_u32 s65, 2
s_cbranch_scc1 L_s2
s_cmp_eq_u32 s65, 0
s_cbranch_scc1 L_spoll
v_and_b32 v92, v92, v93
v_readfirstlane_b32 s55, v92
s_cmp_eq_u32 s55, 0x01010101
s_cbranch_scc0 L_spoll""")
    for i in range(8):
        a(f"buffer_load_dwordx4 v[{96+4*i}:{99+4*i}], v82, s[40:43], s{56+(i>>2)} offen offset:{1024*(i&3)} {XPOL}")
    a(f"""s_mov_b32 s65, 2
s_setpc_b64 s[62:63]
L_spoll:
buffer_load_dwordx2 v[92:93], v94, s[48:51], s68 offen {FPOL}
s_mov_b32 s65, 1
s_setpc_b64 s[62:63]
L_s2:""")
    for st in (4,2,1):
        for i in range(st):
            for r in range(4): a(f"v_add_f32 v{96+4*i+r}, v{96+4*i+r}, v{96+4*(i+st)+r}")
    a(f"""v_cvt_pk_bf16_f32 v62, v96, v97
v_cvt_pk_bf16_f32 v63, v98, v99
ds_write_b16 v85, v62 offset:{QB}
ds_write_b16_d16_hi v85, v62 offset:{QB+16}
ds_write_b16 v85, v63 offset:{QB+32}
ds_write_b16_d16_hi v85, v63 offset:{QB+48}
s_mov_b32 s65, 3
L_sret:
s_setpc_b64 s[62:63]""")
    a("L_bodyV:")
    for d in range(4): block(a,d,28)
    a("s_setpc_b64 s[62:63]")
    a("L_bodyA:")
    for d in range(4): block(a,4+d,28,reload=False)
    a("s_setpc_b64 s[62:63]")

def main(out):
    a=Asm(); gen(a)
    t=HDR+f"""; @launch grid=(256,1,1) block=(256,1,1) lds={LDS}
.amdgcn_target "amdgcn-amd-amdhsa--gfx950"
.text
"""+a.finalize()+f""".section .rodata,"a"
.p2align 6
.amdhsa_kernel {NAME}
  .amdhsa_next_free_vgpr 512
  .amdhsa_next_free_sgpr 102
  .amdhsa_accum_offset 256
  .amdhsa_group_segment_fixed_size 0
  .amdhsa_kernarg_size 64
  .amdhsa_user_sgpr_count 2
  .amdhsa_user_sgpr_kernarg_segment_ptr 1
  .amdhsa_system_sgpr_workgroup_id_x 1
.end_amdhsa_kernel
"""
    open(out,"w").write(t)
main(sys.argv[1])
```

```python
import struct, math, sys, os
from emit import Asm

def f2u(f): return struct.unpack("<I", struct.pack("<f", f))[0]
SCALE = f2u(math.log2(math.e)/math.sqrt(128.0))
NEG = f2u(-1.0e30)
OPOFF = 0x200000; OXOFF=0x400000; WSSZ=0x420000
E=os.environ.get
STAMP=int(E("STAMP","0"))
XPOL=E("XPOL","sc1"); FPOL=E("FPOL","sc1"); CPOL=E("CPOL",XPOL)
KPOL=E("KPOL","nt"); VPOL=E("VPOL","nt"); WQPOL=E("WQPOL","nt"); WOPOL=E("WOPOL","nt"); XIPOL=E("XIPOL","")
SPIN=int(E("SPIN","20000"))
NSLOT=int(E("NSLOT","12"))
PW=int(E("PW","8")); W0B=E("W0B","1,1"); FORCEFB=int(E("FORCEFB","0")); NOFIN=int(E("NOFIN","0")); NW=int(E("NW","28"))
NAME="standalone__mha_block_cached__sampling_kernel"

HDR = """; Kernarg layout for this problem (64 bytes, ptrs only, base s[0:1]):
"""
def stamp(a,i):
    if STAMP: a(f"s_memrealtime s[{86+2*i}:{87+2*i}]")

def srd(a, d, p, size):
    a(f"s_mov_b32 s{d}, s{p}\ns_and_b32 s{d+1}, s{p+1}, 0xffff\ns_mov_b32 s{d+2}, {size:#x}\ns_mov_b32 s{d+3}, 0x20000")

def selectors(a):
    a("""v_and_b32 v56, 1, v1
v_cmp_eq_u32 vcc, 1, v56
v_mov_b32 v57, 0x0c0c0100
v_mov_b32 v58, 0x01000c0c
v_mov_b32 v59, 0x0c0c0302
v_mov_b32 v60, 0x03020c0c
v_cndmask_b32 v57, v57, v58, vcc
v_cndmask_b32 v59, v59, v60, vcc
v_mov_b32 v58, 0x0c0c0c0c
v_bfe_u32 v56, v1, 1, 2""")
    for w in range(4):
        a(f"v_cmp_eq_u32 vcc, {w}, v56\nv_cndmask_b32 v{8+w}, v58, v57, vcc\nv_cndmask_b32 v{12+w}, v58, v59, vcc")

def perm(dst, w, src, par): return f"v_perm_b32 v{dst+w}, {src}, {src}, v{8+4*par+w}"
def frag(a, dst, src, par):
    for w in range(4): a(perm(dst,w,src,par))

WQT=0; WOT=32768; QB=0; ML=512; PART=1024; QF=65536; LDS=65600; SNAP=224
ACC=48; S=52; M=80; L=81
G=96

def slotreg(slot): return ("v",128+32*slot) if slot<4 else ("a",32*(slot-4))
def rr(k,b,n=4): return f"{k}[{b}:{b+n-1}]"
def issueK(a, slot):
    k,r=slotreg(slot)
    for s in range(4): a(f"buffer_load_dwordx4 {rr(k,r+4*s)}, v4, s[20:23], s58 offen offset:{64*s} {KPOL}")
def issueV(a, slot):
    k,r=slotreg(slot); r+=16
    for t in range(4): a(f"buffer_load_dwordx4 {rr(k,r+4*t)}, v5, s[24:27], s58 offen offset:{256*t} {VPOL}")
    a("s_add_u32 s58, s58, 0x4000")
def issue(a,slot): issueK(a,slot); issueV(a,slot)

def block(a, slot, N, reload=True):
    k,kb=slotreg(slot); vb=kb+16
    a(f"s_waitcnt vmcnt({N})")
    for s in range(4):
        a(f"v_mfma_f32_16x16x32_bf16 v[{S}:{S+3}], {rr(k,kb+4*s)}, v[{16+4*s}:{19+4*s}], {'v[%d:%d]'%(S,S+3) if s else 0}")
    if reload: issueK(a,slot)
    a(f"""v_max3_f32 v56, v{S}, v{S+1}, v{S+2}
v_max_f32 v56, v56, v{S+3}
v_mov_b32 v57, v56
v_permlane16_swap_b32 v56, v57
v_max_f32 v56, v56, v57
v_mov_b32 v57, v56
v_permlane32_swap_b32 v56, v57
v_max_f32 v56, v56, v57
v_mul_f32 v56, s59, v56
v_max_f32 v56, v56, v{M}
v_sub_f32 v57, v{M}, v56
v_mov_b32 v{M}, v56
v_exp_f32 v57, v57""")
    for r in range(4): a(f"v_fma_f32 v{58+r}, v{S+r}, s59, -v56")
    for r in range(4): a(f"v_exp_f32 v{58+r}, v{58+r}")
    for r in range(4): a(f"v_mul_f32 v{ACC+r}, v{ACC+r}, v57")
    a(f"""v_cvt_pk_bf16_f32 v62, v58, v59
v_cvt_pk_bf16_f32 v63, v60, v61
v_add_f32 v58, v58, v59
v_add_f32 v60, v60, v61
v_add_f32 v58, v58, v60
v_fma_f32 v{L}, v{L}, v57, v58""")
    for t in range(4): frag(a,64+4*t,f"v{62+(t>>1)}",t&1)
    a(f"s_waitcnt vmcnt({N})")
    for t in range(4):
        a(f"v_mfma_f32_16x16x32_bf16 v[{ACC}:{ACC+3}], {rr(k,vb+4*t)}, v[{64+4*t}:{67+4*t}], v[{ACC}:{ACC+3}]")
    if reload: issueV(a,slot)

def pair_end(a, p):
    a(f"""v_mov_b32 v57, v{L}
v_permlane16_swap_b32 v{L}, v57
v_add_f32 v{L}, v{L}, v57
v_mov_b32 v57, v{L}
v_permlane32_swap_b32 v{L}, v57
v_add_f32 v{L}, v{L}, v57""")
    for r in range(4): a(f"ds_write_b32 v6, v{ACC+r} offset:{PART+32*r}")
    a(f"ds_write_b64 v7, v[{M}:{M+1}] offset:{ML}")
    if p==0: a("v_xor_b32 v6, 0x800, v6\nv_xor_b32 v7, 32, v7")

def init_state(a):
    a(f"v_mov_b32 v{M}, {NEG:#x}\nv_mov_b32 v{L}, 0")
    for r in range(4): a(f"v_mov_b32 v{ACC+r}, 0")

def poll(a, tag, n, dst, loadfn):
    for i in range(n): a(f"s_mov_b64 s[{70+2*i}:{71+2*i}], -1")
    a(f"s_mov_b32 s69, {SPIN}\nL_poll{tag}:")
    for i in range(n):
        a(f"s_mov_b64 exec, s[{70+2*i}:{71+2*i}]\ns_cbranch_execz L_sk{tag}{i}\n{loadfn(i)}\nL_sk{tag}{i}:")
    a(f"s_mov_b64 exec, -1\ns_waitcnt vmcnt(0)\nL_chk{tag}:")
    for i in range(n):
        b=dst+4*i
        a(f"v_max3_u32 v{56+i}, v{b}, v{b+1}, v{b+2}")
    for i in range(n): a(f"v_max_u32 v{56+i}, v{56+i}, v{dst+3+4*i}")
    for i in range(n): a(f"v_cmp_eq_u32 s[{70+2*i}:{71+2*i}], -1, v{56+i}")
    a("s_or_b64 s[4:5], s[70:71], s[72:73]\ns_or_b64 s[6:7], s[74:75], s[76:77]")
    if n==8: a("s_or_b64 s[4:5], s[4:5], s[78:79]\ns_or_b64 s[6:7], s[6:7], s[80:81]\ns_or_b64 s[4:5], s[4:5], s[82:83]\ns_or_b64 s[6:7], s[6:7], s[84:85]")
    a(f"""s_or_b64 s[4:5], s[4:5], s[6:7]
s_cbranch_scc0 L_pdone{tag}
s_sub_u32 s69, s69, 1
s_cbranch_scc0 L_poll{tag}
L_pdone{tag}:""")

def tile_reads(a, base):
    for s in range(4):
        for jj in range(2):
            for u in range(2):
                r=G+8*s+4*jj+2*u
                a(f"ds_read_b64_tr_b16 v[{r}:{r+1}], v{94+jj} offset:{base+8192*s+1024*u}")
        if s==2: a("s_waitcnt lgkmcnt(8)")
def tile_mfma(a):
    for s in range(4):
        for jj in range(2):
            acc=f"v[{48+4*jj}:{51+4*jj}]"; r=G+8*s+4*jj
            a(f"v_mfma_f32_16x16x32_bf16 {acc}, v[{16+4*s}:{19+4*s}], v[{r}:{r+3}], {acc if s else 0}")

def gen(a):
    W0=[int(x) for x in W0B.split(",")]
    a(f""".globl {NAME}
.p2align 8
.type {NAME},@function
{NAME}:
s_cmp_ge_u32 s2, 256
s_cbranch_scc1 L_end
s_load_dwordx16 s[4:19], s[0:1], 0""")
    stamp(a,0)
    a(f"""v_and_b32 v1, 63, v0
v_lshrrev_b32 v4, 6, v0
v_and_b32 v2, 15, v0
v_bfe_u32 v3, v0, 4, 2
v_readfirstlane_b32 s54, v4
s_and_b32 s52, s2, 7
s_lshl_b32 s52, s52, 2
s_bfe_u32 s53, s2, 0x20003
s_add_u32 s52, s52, s53
s_lshr_b32 s53, s2, 5
v_lshlrev_b32 v82, 4, v1
v_lshlrev_b32 v56, 4, v2
v_lshl_add_u32 v91, v3, 13, v56
v_lshlrev_b32 v57, 5, v3
v_xor_b32 v89, v57, v91
v_xor_b32 v90, 0x80, v89
v_lshl_add_u32 v86, v3, 11, v56
v_xor_b32 v86, v57, v86
v_xor_b32 v87, 0x80, v86
v_mov_b32 v64, -1
v_mov_b32 v65, -1
v_mov_b32 v66, -1
v_mov_b32 v67, -1
v_lshlrev_b32 v92, 11, v2
v_lshl_add_u32 v92, v3, 4, v92
v_lshlrev_b32 v93, 3, v1
v_lshl_add_u32 v5, v3, 10, v56
v_lshlrev_b32 v4, 8, v2
v_lshl_add_u32 v4, v3, 4, v4
v_mov_b32 v83, 0
v_mov_b32 v84, 1
s_lshl_b32 s68, s52, 16
s_lshl_b32 s55, s53, 10
s_add_u32 s68, s68, s55
s_lshl_b32 s66, s53, 18
s_lshl_b32 s56, s52, 8
s_add_u32 s66, s66, s56
s_add_u32 s66, s66, {OPOFF:#x}
s_lshl_b32 s61, s52, 12
s_add_u32 s61, s61, {OXOFF:#x}
s_lshl_b32 s55, s53, 9
s_add_u32 s67, s61, s55
s_lshl_b32 s65, s53, 20
s_lshl_b32 s55, s54, 18
s_add_u32 s65, s65, s55
s_add_u32 s65, s65, s56
s_lshl_b32 s69, s53, 8
s_lshl_b32 s71, s52, 18
s_lshl_b32 s55, s54, 16
s_add_u32 s71, s71, s55
s_add_u32 s71, s71, s69
s_lshl_b32 s70, s54, 13
s_lshl_b32 s60, s53, 6
s_add_u32 s60, s60, s52
s_lshl_b32 s60, s60, 19
s_lshl_b32 s55, s54, 12
s_add_u32 s60, s60, s55
s_and_b32 s64, s52, 1
s_lshl_b32 s55, s64, 24
s_xor_b32 s60, s60, s55
s_mov_b32 s58, s60
s_lshl_b32 s72, s52, 3
s_add_u32 s3, s72, s53
v_lshlrev_b32 v88, 3, v2
v_lshl_add_u32 v88, v3, 14, v88
s_lshl_b32 s55, s54, 8
s_add_u32 s56, s68, s55
s_add_u32 s57, s56, 0x2000
s_lshl_b32 s55, s54, 16
s_add_u32 s66, s66, s55
s_add_u32 s74, s66, 0x8000
s_lshl_b32 s76, s52, 16
s_lshl_b32 s55, s53, 13
s_add_u32 s76, s76, s55
s_add_u32 s77, s76, 0x1000
v_mov_b32 v79, {QF:#x}
ds_write_b32 v79, v83
ds_write_b32 v79, v83 offset:4
s_waitcnt lgkmcnt(0)""")
    srd(a,40,18,WSSZ); srd(a,28,10,0x800000); srd(a,36,4,0x8000)
    for t in range(8):
        a(f"s_mov_b32 m0, s70\ns_add_u32 s70, s70, 0x400\nbuffer_load_dwordx4 v{89+((t>>1)&1)}, s[28:31], s65 offen {WQPOL} lds\ns_add_u32 s65, s65, 0x8000")
    for s in range(4):
        a(f"buffer_load_dwordx4 v[{16+4*s}:{19+4*s}], v92, s[36:39], s69 offen offset:{64*s} {XIPOL}")
    for jj in range(2):
        for h2 in range(2):
            r=40+4*jj+2*h2
            a(f"buffer_load_dwordx2 v[{r}:{r+1}], v88, s[40:43], s{56+h2} offen offset:{128*jj} {XPOL}")
    a("s_cmp_lg_u32 s54, 0\ns_cbranch_scc1 L_nosnap")
    for i in range(8): a(f"buffer_load_dwordx4 v[{SNAP+4*i}:{SNAP+3+4*i}], v82, s[40:43], s{76+(i>>2)} offen offset:{1024*(i&3)} {XPOL}")
    a(f"""L_nosnap:
buffer_store_dwordx4 v[64:67], v91, s[40:43], s66 offen {CPOL}
buffer_store_dwordx4 v[64:67], v91, s[40:43], s74 offen {CPOL}
buffer_store_dwordx2 v[64:65], v93, s[40:43], s67 offen {CPOL}""")
    srd(a,32,12,0x800000); srd(a,48,16,0x100); srd(a,20,6,0x10000000); srd(a,24,8,0x10000000)
    a(f"""s_add_u32 s70, s70, {WOT-8192:#x}
""")
    for t in range(8):
        a(f"s_mov_b32 m0, s70\ns_add_u32 s70, s70, 0x400\nbuffer_load_dwordx4 v{86+((t>>1)&1)}, s[32:35], s71 offen {WOPOL} lds\ns_add_u32 s71, s71, 0x2000")
    issue(a,0)
    srd(a,44,14,0x8000)
    selectors(a)
    a(f"""v_lshrrev_b32 v56, 2, v2
v_lshl_add_u32 v57, v3, 3, v56
v_lshlrev_b32 v57, 8, v57
v_and_b32 v58, 1, v3
v_lshl_add_u32 v58, v58, 2, v56
v_lshlrev_b32 v58, 1, v58
s_lshl_b32 s55, s54, 2
v_xor_b32 v58, s55, v58
v_bfe_u32 v59, v2, 1, 1
v_or_b32 v58, v58, v59
v_lshl_add_u32 v57, v58, 4, v57
v_and_b32 v59, 1, v2
v_lshl_add_u32 v94, v59, 3, v57
v_xor_b32 v95, 32, v94
v_mov_b32 v92, v88
s_mov_b32 s59, {SCALE:#x}
v_lshlrev_b32 v85, 2, v1
s_lshl_b32 s55, s64, 8
v_lshlrev_b32 v87, 4, v3
v_add_u32 v87, s55, v87
v_xor_b32 v88, 0x100, v87
s_lshl_b32 s55, s54, 9
s_lshl_b32 s65, s64, 11
s_add_u32 s55, s55, s65
v_and_b32 v6, 7, v1
v_lshlrev_b32 v6, 2, v6
v_lshl_add_u32 v6, v3, 7, v6
v_add_u32 v6, s55, v6
s_lshl_b32 s55, s54, 3
s_lshl_b32 s65, s64, 5
s_add_u32 s55, s55, s65
v_mov_b32 v7, s55
s_waitcnt vmcnt(19)""")
    stamp(a,1)
    a("s_barrier")
    tile_reads(a,WQT)
    for r in range(8): a(f"v_not_b32 v{40+r}, v{40+r}")
    a("s_waitcnt lgkmcnt(0)")
    tile_mfma(a)
    for r in range(8): a(f"v_bfi_b32 v{48+r}, 1, v{40+r}, v{48+r}")
    for jj in range(2):
        for h2 in range(2):
            r=48+4*jj+2*h2
            a(f"buffer_store_dwordx2 v[{r}:{r+1}], v92, s[40:43], s{56+h2} offen offset:{128*jj} {XPOL}")
    if STAMP==1: stamp(a,2)
    nb=[1]
    def w0issue(n):
        for _ in range(n): issue(a,nb[0]); nb[0]+=1
    gl=lambda i: f"buffer_load_dwordx4 v[{G+4*i}:{G+3+4*i}], v82, s[40:43], s{56+(i>>2)} offen offset:{1024*(i&3)} {XPOL}"
    a("""s_cmp_lg_u32 s54, 0
s_cbranch_scc1 L_waitq
s_mov_b32 s56, s76
s_mov_b32 s57, s77
s_mov_b32 s65, s72
s_mov_b32 s68, 0
s_mov_b32 s69, 0""")
    w0issue(W0[0])
    a(f"s_waitcnt vmcnt({8*W0[0]})")
    for i in range(8): a(gl(i))
    w0issue(W0[1])
    assert nb[0]<=3
    a(f"s_waitcnt vmcnt({8*W0[1]})\ns_branch L_qchk\nL_qretry:")
    a(f"""s_call_b64 s[62:63], L_tryflag
s_add_u32 s69, s69, 1
s_cmp_lt_u32 s69, 4
s_cbranch_scc1 L_qreload
buffer_load_dwordx2 v[56:57], v83, s[48:51], s65 offen {FPOL}
s_waitcnt vmcnt(0)
v_and_b32 v56, v56, v57
v_readfirstlane_b32 s55, v56
s_cmp_eq_u32 s55, 0x01010101
s_cbranch_scc1 L_qtrust
s_cmp_gt_u32 s69, {SPIN}
s_cbranch_scc1 L_qtrust
L_qreload:""")
    for i in range(8):
        a(f"s_mov_b64 exec, s[{70+2*i}:{71+2*i}]\ns_cbranch_execz L_skq{i}\n{gl(i)}\nL_skq{i}:")
    a("s_mov_b64 exec, -1\ns_waitcnt vmcnt(0)\nL_qchk:")
    for i in range(8):
        b=G+4*i; o=SNAP+4*i
        a(f"""v_xor_b32 v{56+i}, v{b}, v{o}
v_xor_b32 v64, v{b+1}, v{o+1}
v_xor_b32 v65, v{b+2}, v{o+2}
v_xor_b32 v66, v{b+3}, v{o+3}
v_and_b32 v{56+i}, v{56+i}, v64
v_and_b32 v65, v65, v66
v_and_b32 v{56+i}, v{56+i}, v65
v_and_b32 v{56+i}, {0 if FORCEFB else 1}, v{56+i}""")
    for i in range(8): a(f"v_cmp_eq_u32 s[{70+2*i}:{71+2*i}], 0, v{56+i}")
    a("""s_or_b64 s[4:5], s[70:71], s[72:73]
s_or_b64 s[6:7], s[74:75], s[76:77]
s_or_b64 s[4:5], s[4:5], s[78:79]
s_or_b64 s[6:7], s[6:7], s[80:81]
s_or_b64 s[4:5], s[4:5], s[82:83]
s_or_b64 s[6:7], s[6:7], s[84:85]
s_or_b64 s[4:5], s[4:5], s[6:7]
s_cbranch_scc1 L_qretry
s_branch L_qok
L_qtrust:""")
    for i in range(8): a(gl(i))
    a("s_waitcnt vmcnt(0)\nL_qok:")
    for st in (4,2,1):
        for i in range(st):
            for r in range(4): a(f"v_add_f32 v{G+4*i+r}, v{G+4*i+r}, v{G+4*(i+st)+r}")
    a(f"""v_cvt_pk_bf16_f32 v62, v{G}, v{G+2}
v_cvt_pk_bf16_f32 v63, v{G+1}, v{G+3}
ds_write_b32 v85, v62 offset:{QB}
ds_write_b32 v85, v63 offset:{QB+256}
ds_write_b32 v79, v84""")
    if STAMP==2: stamp(a,2)
    a(f"s_branch L_fastK{nb[0]}\nL_waitq:\ns_mov_b32 s68, 1")
    def chk(lbl):
        a(f"s_waitcnt vmcnt({PW}) lgkmcnt(0)\nv_readfirstlane_b32 s55, v78\nds_read_b32 v78, v79\ns_cmp_lg_u32 s55, 0\ns_cbranch_scc1 {lbl}")
    issue(a,1)
    a("s_waitcnt vmcnt(8)\nds_add_u32 v79, v84 offset:4\nds_read_b32 v78, v79")
    for r in range(2,NSLOT):
        chk(f"L_fastK{r}"); issueK(a,r)
        chk(f"L_fastV{r}"); issueV(a,r)
    a(f"""s_mov_b32 s70, {SPIN*64}
L_qspin:
s_waitcnt lgkmcnt(0)
v_readfirstlane_b32 s55, v78
ds_read_b32 v78, v79
s_cmp_lg_u32 s55, 0
s_cbranch_scc1 L_qdone
s_sleep 1
s_sub_u32 s70, s70, 1
s_cbranch_scc0 L_qspin
s_branch L_qdone""")
    for r in range(2,NSLOT):
        a(f"L_fastK{r}:\ns_waitcnt vmcnt(48)"); issueK(a,r)
        a(f"L_fastV{r}:"); issueV(a,r)
    a("L_qdone:")
    for p in range(2):
        for s in range(4):
            r=16+16*p+4*s
            a(f"ds_read_b128 v[{r}:{r+3}], v{87+p} offset:{QB+64*s}")
    init_state(a)
    a("s_add_u32 s65, s66, 0x8000\ns_waitcnt lgkmcnt(0)")
    stamp(a,4)
    nA=(NSLOT-4)//4
    for i in range(16):
        if i==7: a("s_xor_b32 s58, s60, 0x1000000")
        if i==15: a("s_mov_b32 s58, 0x20000000")
        if i==14: a(f"buffer_load_dword v92, v85, s[48:51], 0 offen {FPOL}")
        if i in (0,1,2,3):
            a(f"s_cmp_lg_u32 s68, 0\ns_cbranch_scc1 L_fl{i}")
            if i<3: a("s_call_b64 s[62:63], L_tryflag")
            else: a(f"s_mov_b32 s69, {SPIN*16}\nL_flspin:\ns_call_b64 s[62:63], L_tryflag\ns_cmp_lg_u32 s68, 0\ns_cbranch_scc1 L_fl3\ns_sub_u32 s69, s69, 1\ns_cbranch_scc0 L_flspin")
            a(f"L_fl{i}:")
        body = f"L_bodyA{i-1}" if 1<=i<=nA else "L_bodyV"
        a(f"s_call_b64 s[62:63], {body}")
        if i==7:
            pair_end(a,0); init_state(a)
            for r in range(16): a(f"v_mov_b32 v{16+r}, v{32+r}")
    stamp(a,5)
    pair_end(a,1)
    a(f"""v_lshrrev_b32 v56, 5, v1
v_and_b32 v57, 31, v1
v_lshlrev_b32 v57, 4, v57
v_lshl_add_u32 v57, v56, 11, v57
v_lshlrev_b32 v56, 5, v56
s_waitcnt lgkmcnt(0)
s_barrier
s_cmp_lg_u32 s54, 0
s_cbranch_scc1 L_nocomb
ds_read_b128 v[16:19], v56 offset:{ML}
ds_read_b128 v[20:23], v56 offset:{ML+16}""")
    for w in range(4): a(f"ds_read_b128 v[{64+4*w}:{67+4*w}], v57 offset:{PART+512*w}")
    a("""s_waitcnt lgkmcnt(4)
v_max3_f32 v24, v16, v18, v20
v_max_f32 v24, v24, v22
v_sub_f32 v16, v16, v24
v_sub_f32 v18, v18, v24
v_sub_f32 v20, v20, v24
v_sub_f32 v22, v22, v24
v_exp_f32 v16, v16
v_exp_f32 v18, v18
v_exp_f32 v20, v20
v_exp_f32 v22, v22
v_mul_f32 v25, v16, v17
v_fmac_f32 v25, v18, v19
v_fmac_f32 v25, v20, v21
v_fmac_f32 v25, v22, v23
v_rcp_f32 v25, v25
v_mul_f32 v16, v16, v25
v_mul_f32 v18, v18, v25
v_mul_f32 v20, v20, v25
v_mul_f32 v22, v22, v25
s_waitcnt lgkmcnt(0)""")
    for r in range(4): a(f"v_mul_f32 v{64+r}, v{64+r}, v16")
    for w in range(1,4):
        for r in range(4): a(f"v_fmac_f32 v{64+r}, v{64+4*w+r}, v{16+2*w}")
    a(f"""v_cvt_pk_bf16_f32 v62, v64, v65
v_cvt_pk_bf16_f32 v63, v66, v67
buffer_store_dwordx2 v[62:63], v93, s[40:43], s67 offen {XPOL}
L_nocomb:""")
    tile_reads(a,WOT)
    a(f"""s_mov_b32 s69, {SPIN}
s_mov_b32 s55, 0x01010101
s_waitcnt vmcnt(1)
L_fchk:
v_cmp_ne_u32 vcc, s55, v92
s_cbranch_vccz L_fok
buffer_load_dword v92, v85, s[48:51], 0 offen {FPOL}
s_waitcnt vmcnt(0)
s_sub_u32 s69, s69, 1
s_cbranch_scc0 L_fchk
L_fok:""")
    if NOFIN: a(f"s_branch {'L_stamps' if STAMP else 'L_end'}")
    poll(a,"o",4,16,lambda i: f"buffer_load_dwordx4 v[{16+4*i}:{19+4*i}], v4, s[40:43], s61 offen offset:{64*i} {XPOL}")
    a("s_waitcnt lgkmcnt(0)")
    tile_mfma(a)
    a(f"buffer_store_dwordx4 v[48:51], v91, s[40:43], s66 offen {XPOL}\nbuffer_store_dwordx4 v[52:55], v91, s[40:43], s65 offen {XPOL}")
    stamp(a,6)
    a("s_cmp_lg_u32 s54, 0")
    a(f"s_cbranch_scc1 {'L_stamps' if STAMP else 'L_end'}")
    a(f"""s_lshl_b32 s56, s53, 18
s_lshl_b32 s55, s52, 13
s_add_u32 s56, s56, s55
s_add_u32 s56, s56, {OPOFF:#x}
s_add_u32 s57, s56, 0x1000
v_lshlrev_b32 v5, 11, v3
v_lshl_add_u32 v5, v2, 1, v5
s_and_b32 s60, s52, 3
s_lshl_b32 s60, s60, 13
s_lshl_b32 s55, s53, 8
s_add_u32 s60, s60, s55
s_lshr_b32 s55, s52, 2
s_lshl_b32 s55, s55, 5
s_add_u32 s60, s60, s55
s_call_b64 s[62:63], L_gather
v_permlane32_swap_b32 v{G}, v{G+2}
v_permlane32_swap_b32 v{G+1}, v{G+3}
v_add_f32 v{G}, v{G}, v{G+2}
v_add_f32 v{G+1}, v{G+1}, v{G+3}
v_permlane16_swap_b32 v{G}, v{G+1}
v_add_f32 v{G}, v{G}, v{G+1}
v_cvt_pk_bf16_f32 v{G}, v{G}, v{G}
buffer_store_short v{G}, v5, s[44:47], s60 offen""")
    if STAMP:
        a("L_stamps:\ns_waitcnt vmcnt(0)")
        stamp(a,7)
        a("""s_lshl_b32 s55, s2, 2
s_add_u32 s55, s55, s54
s_lshl_b32 s55, s55, 5
s_add_u32 s55, s55, 0x800000
s_waitcnt lgkmcnt(0)""")
        for i in range(8): a(f"v_mov_b32 v{16+i}, s{86+2*i}")
        a("""v_mov_b32 v24, s55
global_store_dwordx4 v24, v[16:19], s[18:19]
global_store_dwordx4 v24, v[20:23], s[18:19] offset:16""")
    a("L_end:\ns_endpgm")
    a(f"""L_tryflag:
s_cmp_lg_u32 s68, 0
s_cbranch_scc1 L_tfret
v_mov_b32 v56, {QF:#x}
ds_read_b32 v56, v56 offset:4
s_waitcnt lgkmcnt(0)
v_readfirstlane_b32 s55, v56
s_cmp_lg_u32 s55, 192
s_cbranch_scc1 L_tfret
s_mov_b64 exec, 1
buffer_store_byte v84, v83, s[48:51], s3 offen {FPOL}
s_mov_b64 exec, -1
s_mov_b32 s68, 1
L_tfret:
s_setpc_b64 s[62:63]""")
    a("L_gather:")
    poll(a,"g",8,G,lambda i: f"buffer_load_dwordx4 v[{G+4*i}:{G+3+4*i}], v82, s[40:43], s{56+(i>>2)} offen offset:{1024*(i&3)} {XPOL}")
    for st in (4,2,1):
        for i in range(st):
            for r in range(4): a(f"v_add_f32 v{G+4*i+r}, v{G+4*i+r}, v{G+4*(i+st)+r}")
    a("s_setpc_b64 s[62:63]")
    a("L_bodyV:")
    for d in range(4): block(a,d,NW)
    a("s_setpc_b64 s[62:63]")
    for b in range(nA):
        a(f"L_bodyA{b}:")
        for d in range(4): block(a,4+4*b+d,NW,reload=False)
        a("s_setpc_b64 s[62:63]")

def main(out):
    a=Asm(); gen(a)
    t=HDR+f"""; @launch grid=(256,1,1) block=(256,1,1) lds={LDS}
.amdgcn_target "amdgcn-amd-amdhsa--gfx950"
.text
"""+a.finalize()+f""".section .rodata,"a"
.p2align 6
.amdhsa_kernel {NAME}
  .amdhsa_next_free_vgpr 512
  .amdhsa_next_free_sgpr 102
  .amdhsa_accum_offset 256
  .amdhsa_group_segment_fixed_size 0
  .amdhsa_kernarg_size 64
  .amdhsa_user_sgpr_count 2
  .amdhsa_user_sgpr_kernarg_segment_ptr 1
  .amdhsa_system_sgpr_workgroup_id_x 1
.end_amdhsa_kernel
"""
    open(out,"w").write(t)
main(sys.argv[1])
```
